```python
import torch

def _softmax(x, axis=-1):
    return torch.softmax(x, dim=axis)
def _gelu(x):
    return torch.nn.functional.gelu(x, approximate="tanh")
def _silu(x):
    return torch.nn.functional.silu(x)
def _sigmoid(x):
    return torch.sigmoid(x)
def _layernorm(x, axis=-1, eps=1e-5):
    m = x.mean(dim=axis, keepdim=True)
    v = x.var(dim=axis, keepdim=True, unbiased=False)
    return (x - m) / torch.sqrt(v + eps)
def _scatter_add(tgt, idx, src, axis=0):
    return tgt.clone().index_add_(axis, idx, src)
def _segment_sum(src, seg, n):
    out = torch.zeros((n,) + src.shape[1:], dtype=src.dtype)
    return out.index_add_(0, seg, src)
def _pad(x, pw):
    flat = tuple(v for pair in reversed(pw) for v in pair)
    return torch.nn.functional.pad(x, flat)

kernel_name = 'standalone__gqa_softmax__near_ridge'

def setup_inputs():

    _w = (lambda a: (lambda t: t.to(torch.bfloat16) if t.is_floating_point() else t)(torch.as_tensor(a)))
    B, Hq, Hkv, Sq, Sk, D = 16, 32, 32, 384, 512, 128
    return {
        "q": _w((lambda *s: torch.randn(*s, dtype=torch.bfloat16) * 0.8)(B, Hq, Sq, D)),
        "k": _w((lambda *s: torch.randn(*s, dtype=torch.bfloat16) * 0.8)(B, Hkv, Sk, D)),
        "v": _w((lambda *s: torch.randn(*s, dtype=torch.bfloat16) * 0.05)(B, Hkv, Sk, D)),
    }

def reference(q, k, v):
    B, Hq, Sq, D = q.shape
    Hkv = k.shape[1]
    rep = Hq // Hkv
    k = (lambda x, n, axis: torch.repeat_interleave(x, n, dim=axis))(k, rep, axis=1)
    v = (lambda x, n, axis: torch.repeat_interleave(x, n, dim=axis))(v, rep, axis=1)
    scale = D ** -0.5
    scores = torch.einsum("bhqd,bhkd->bhqk", q, k) * scale
    p = _softmax(scores, axis=-1)
    return torch.einsum("bhqk,bhkd->bhqd", p, v)
```

```python
import heapq


def R(f, lo, n=1):
    return [f"{f}{lo + i}" for i in range(n)]


def rng(f, lo, n):
    return f"{f}{lo}" if n == 1 else f"{f}[{lo}:{lo + n - 1}]"


class Ins:
    __slots__ = ("text", "kind", "rd", "wr", "cost", "meta", "n_v", "n_l")

    def __init__(self, text, kind, rd=(), wr=(), cost=4, **meta):
        self.text = text
        self.kind = kind
        self.rd = list(rd)
        self.wr = list(wr)
        self.cost = cost
        self.meta = meta
        self.n_v = None
        self.n_l = None

    def render(self):
        if self.kind == "wait":
            parts = []
            if self.meta.get("v"):
                n = self.n_v if self.n_v is not None else 63
                parts.append(f"vmcnt({n})")
            if self.meta.get("l"):
                n = self.n_l if self.n_l is not None else 15
                parts.append(f"lgkmcnt({n})")
            return "    s_waitcnt " + " ".join(parts)
        if self.kind == "label":
            return self.text
        return "    " + self.text


def mfma(df, d, af, a, bf, b, czero=False):
    D = R(df, d, 16)
    c = "0" if czero else rng(df, d, 16)
    i = Ins(f"v_mfma_f32_32x32x16_bf16 {rng(df, d, 16)}, {rng(af, a, 4)}, {rng(bf, b, 4)}, {c}", "mfma",
            rd=R(af, a, 4) + R(bf, b, 4) + ([] if czero else D), wr=D, cost=8)
    i.meta["ab"] = R(af, a, 4) + R(bf, b, 4)
    i.meta["c"] = [] if czero else D
    return i


def valu(text, rd, wr, cost=4, **meta):
    return Ins(text, "valu", rd, wr, cost, **meta)


def trans(text, rd, wr):
    return Ins(text, "trans", rd, wr, 8)


def perm(a, b):
    return Ins(f"v_permlane32_swap_b32 v{a}, v{b}", "perm", [f"v{a}", f"v{b}"], [f"v{a}", f"v{b}"], 8)


def salu(text, rd, wr, **meta):
    return Ins(text, "salu", rd, wr, 4, **meta)


def wait(v=False, l=False, **meta):
    return Ins("", "wait", cost=4, v=v, l=l, **meta)


def bar():
    return Ins("s_barrier", "bar", cost=12)


def label(name):
    return Ins(name + ":", "label", cost=0)


def nop(n):
    return Ins(f"s_nop {n}", "nop", cost=4 * (n + 1), n=n)


def raw(text, cost=4, kind="raw", rd=(), wr=(), **meta):
    return Ins(text, kind, rd, wr, cost, **meta)


class Op:
    __slots__ = ("ins", "rel", "dl", "deps", "pos", "gap", "seq", "prio")

    def __init__(self, ins, rel, dl, deps=(), pos="mid", prio=None):
        self.ins = ins
        self.rel = rel
        self.dl = dl
        self.deps = list(deps)
        self.pos = pos
        self.gap = None
        self.prio = prio


def schedule(mf, ops, budget, verbose=False, name=""):
    G = len(mf)
    for k, o in enumerate(ops):
        o.seq = k
        o.gap = None
        assert o.rel <= o.dl, (name, o.ins.text, o.rel, o.dl)
        assert o.dl < G, (name, o.ins.text, o.dl, G)
    changed = True
    while changed:
        changed = False
        for o in ops:
            for d, mg in o.deps:
                m = mg
                if o.pos == "front" and d.pos != "front":
                    m = max(m, 1)
                if d.dl > o.dl - m:
                    d.dl = o.dl - m
                    changed = True
    for o in ops:
        assert o.rel <= o.dl, ("infeasible", name, o.ins.text, o.rel, o.dl)
    gaps = [dict(front=[], mid=[], end=[]) for _ in range(G)]
    left = list(ops)
    loads = []
    for g in range(G):
        rem = budget[g]
        fixed = [o for o in left if o.rel == o.dl == g]

        def ready(o):
            if o.rel > g:
                return False
            for d, mg in o.deps:
                m = mg
                if o.pos == "front" and d.pos != "front":
                    m = max(m, 1)
                if d.pos == "end" and o.pos != "end":
                    m = max(m, 1)
                if d.gap is None or d.gap + m > g:
                    return False
            return True

        must = sum(o.ins.cost for o in left if o.dl == g)
        spare = rem - must
        used = 0
        while True:
            cand = [o for o in left if ready(o)]
            cand.sort(key=lambda o: (o.dl if o.prio is None else min(o.dl, o.prio), o.seq))
            pick = None
            for o in cand:
                if o.dl == g:
                    pick = o
                    break
            if pick is None:
                for o in cand:
                    if o.ins.cost <= spare:
                        pick = o
                        spare -= o.ins.cost
                        break
            if pick is None:
                break
            pick.gap = g
            used += pick.ins.cost
            gaps[g][pick.pos].append(pick)
            left.remove(pick)
        late = [o for o in left if o.dl <= g]
        assert not late, ("missed deadline", name, g, [o.ins.text for o in late])
        loads.append(used)
    assert not left
    out = []
    for g in range(G):
        if mf[g] is not None:
            out.append(mf[g])
        for p in ("front", "mid", "end"):
            out += [o.ins for o in gaps[g][p]]
    est = sum(max(32 if mf[g] is not None else 0, loads[g] + (8 if mf[g] is not None else 0)) for g in range(G))
    if verbose:
        print(f"; sched {name}: est {est} cyc, loads {loads}")
    return out, est, loads


VALU_KINDS = ("valu", "trans", "perm")
MEM_KINDS = ("ds_r", "ds_w", "dma", "vld", "vst")


def states(ins):
    if ins.kind == "label":
        return 0
    if ins.kind == "nop":
        return ins.meta["n"] + 1
    return 1


def need_states(prod, cons):
    n = 0
    pw, pr = set(prod.wr), set(prod.rd)
    cw, cr = set(cons.wr), set(cons.rd)
    pk, ck = prod.kind, cons.kind
    if pk == "mfma":
        if ck == "mfma":
            if pw & set(cons.meta["ab"]):
                n = max(n, 12)
            c = set(cons.meta["c"])
            if pw & c and not (c == pw):
                n = max(n, 10)
            if pw & cw and cw != pw:
                n = max(n, 12)
        elif ck in VALU_KINDS or ck in MEM_KINDS:
            if pw & (cr | cw):
                n = max(n, 12)
            if ck in VALU_KINDS and set(prod.meta["c"]) & cw:
                n = max(n, 7)
    if pk in VALU_KINDS:
        vw = {r for r in pw if r[0] in "va" and r != "vcc"}
        sw = {r for r in pw if r[0] == "s" or r == "vcc"}
        if ck == "mfma" and vw & cr:
            n = max(n, 2)
        if ck == "perm" and vw & cr:
            n = max(n, 2)
        if pk == "trans" and ck in ("valu", "perm") and vw & cr:
            n = max(n, 1)
        if cons.meta.get("readlane") and vw & cr:
            n = max(n, 1)
        if sw & cr:
            if ck in VALU_KINDS:
                n = max(n, 2)
            if ck in ("dma", "vld", "vst"):
                n = max(n, 5)
            if ck == "salu":
                n = max(n, 2)
    if pk == "salu" and "m0" in pw and ck == "dma":
        n = max(n, 1)
    if pk == "vst" and (ck in VALU_KINDS or ck in ("ds_r", "vld", "mfma")):
        if set(prod.meta["data"]) & cw:
            n = max(n, 2)
    return n


def check_hazards(trace, segs, fix_ok):
    total = 0
    while True:
        lin = []
        for s in trace:
            lin += [(s, i) for i in segs[s]]
        bad = None
        for k, (s, c) in enumerate(lin):
            if c.kind in ("label", "nop", "wait", "bar", "branch"):
                continue
            dist = 0
            j = k - 1
            while j >= 0 and dist < 12:
                p = lin[j][1]
                n = need_states(p, c)
                if n > dist:
                    bad = (s, c, p, n - dist)
                    break
                dist += states(p)
                j -= 1
            if bad:
                break
        if not bad:
            return total
        s, c, p, short = bad
        if s not in fix_ok:
            raise RuntimeError(f"hazard in {s}: '{p.text}' -> '{c.text}' short by {short}")
        idx = next(i for i, x in enumerate(segs[s]) if x is c)
        segs[s].insert(idx, nop(short - 1))
        total += short


def check_scc(trace, segs):
    lin = []
    for s in trace:
        lin += segs[s]
    last = None
    for i in lin:
        if "scc" in i.rd:
            want = i.meta.get("scc_from")
            assert last is not None and (want is None or last.meta.get("scc_id") == want), (i.text, last and last.text)
        if "scc" in i.wr:
            last = i


def derive_waits(trace, segs, sim_init):
    lin = []
    for s in trace:
        lin += segs[s]
    for i in lin:
        if i.kind == "wait":
            i.n_v = None
            i.n_l = None
    st = dict(sim_init)
    vops = []
    lops = []
    vpos, lpos = {}, {}
    pend_v, pend_l = {}, {}
    slot = {}
    last_wv = last_wl = None
    bar_wv = None
    first_pre = None
    bar_l_done = -1
    done_v = done_l = -1
    reqs = []

    def req(w, issued, opn, cls, why):
        nonlocal done_v, done_l
        assert w is not None and opn < issued, ("no wait covers", why)
        n = issued - 1 - opn
        if cls == "v":
            n = min(n, 63)
            w.n_v = n if w.n_v is None else min(w.n_v, n)
        else:
            n = min(n, 15)
            w.n_l = n if w.n_l is None else min(w.n_l, n)

    bar_wl = None
    for k, i in enumerate(lin):
        sim = i.meta.get("sim")
        touched = set(i.rd) | set(i.wr)
        if i.kind not in ("wait", "label", "bar"):
            for r in touched:
                if r in pend_l:
                    opn = pend_l.pop(r)
                    if not (i.kind == "ds_r" and r in i.wr):
                        req(last_wl[0] if last_wl else None, last_wl[1] if last_wl else 0, opn, "l", (i.text, r))
                if r in pend_v:
                    opn = pend_v.pop(r)
                    req(last_wv[0] if last_wv else None, last_wv[1] if last_wv else 0, opn, "v", (i.text, r))
        if i.kind == "wait":
            if i.meta.get("v"):
                last_wv = (i, len(vops))
                if i.meta.get("pre") and first_pre is None:
                    first_pre = last_wv
            if i.meta.get("l"):
                last_wl = (i, len(lops))
        elif i.kind == "bar":
            bar_wv = first_pre
            first_pre = None
            bar_wl = last_wl
        elif i.kind in ("vld", "vst", "dma"):
            n = len(vops)
            vops.append(k)
            if i.kind == "vld":
                for r in i.wr:
                    pend_v[r] = n
            if i.kind == "dma":
                ten = i.meta["ten"]
                addr = st["m0"] + i.meta["imm"]
                goff = st[i.meta["soff"]] + i.meta["imm"]
                sl = addr // 8192
                blk = goff // 8192
                assert (addr % 8192) == (goff % 8192), (i.text, addr, goff)
                old = slot.get(sl)
                if old is not None and (old["ten"], old["blk"]) != (ten, blk):
                    assert old["nread"] == old["want"] or old["blk"] >= 32, ("overwriting unread slot", i.text, old, blk)
                    if old["lastread"] is not None:
                        req(bar_wl[0], bar_wl[1], old["lastread"], "l", ("war", i.text))
                    old = None
                if old is None:
                    slot[sl] = dict(ten=ten, blk=blk, dma=n, nread=0, want=8 if ten == "K" else 16, lastread=None, ndma=1)
                else:
                    old["dma"] = n
                    old["ndma"] += 1
        elif i.kind in ("ds_r", "ds_w"):
            n = len(lops)
            lops.append(k)
            if i.kind == "ds_r":
                for r in i.wr:
                    pend_l[r] = n
                ten = i.meta.get("ten")
                if ten in ("K", "V"):
                    addr = st[i.meta["areg"]] + i.meta["imm"]
                    sl = addr // 8192
                    cnt = st.get("cnt" + ten, 0)
                    per = 8 if ten == "K" else 16
                    want_blk = cnt // per
                    st["cnt" + ten] = cnt + 1
                    c = slot.get(sl)
                    assert c is not None and c["ten"] == ten and c["blk"] == want_blk and c["ndma"] == 2, (
                        "wrong slot", i.text, addr, c, want_blk)
                    c["nread"] += 1
                    c["lastread"] = n
                    assert bar_wv is not None
                    req(bar_wv[0], bar_wv[1], c["dma"], "v", ("raw", i.text))
        if sim:
            sim(st)
    for i in lin:
        if i.kind == "wait":
            if i.meta.get("force_v") is not None:
                i.n_v = i.meta["force_v"] if i.n_v is None else min(i.n_v, i.meta["force_v"])
            if i.meta.get("force_l") is not None:
                i.n_l = i.meta["force_l"] if i.n_l is None else min(i.n_l, i.meta["force_l"])
    out = 0
    mx = 0
    for i in lin:
        if i.kind in ("vld", "vst", "dma"):
            out += 1
            mx = max(mx, out)
        if i.kind == "wait" and i.meta.get("v") and i.n_v is not None:
            out = min(out, i.n_v)
    return mx
```

```python
import math
import struct
import sys
from asmlib import *

NAME = "standalone__gqa_softmax__near_ridge"
OPT = dict(nt=1, stamp=0, slow=1, align=1, qglue=4, thr=0x4E800000)
for a in sys.argv[2:]:
    k, v = a.split("=")
    OPT[k] = int(v, 0)
VERB = True


def f2u(x):
    return struct.unpack("<I", struct.pack("<f", x))[0]


CSC = math.log2(math.e) / math.sqrt(128.0)

def vO(t, db): return 64 * t + 16 * db
SB = [192, 208]
vKA = list(range(224, 232))
vVA = list(range(232, 236))
vL = [236, 237, 238]
vM = [239, 240, 241]
vDK, vDV, vQG, vOS, vQW, vQR = 242, 243, 244, 245, 246, 247
vRI = [248, 249, 250]
vT = [251, 252, 253, 254, 255]
def aQ(t, ks): return 32 * t + 4 * ks
def aQS(t, n): return 96 + 32 * t + 4 * n
def aK(ks): return 192 + 4 * ks
def aV(idx): return 224 + 4 * idx

sW = 3
SRD_K, SRD_V, SRD_Q, SRD_O = 8, 12, 16, 20
sC, sOff, sMask, sMaskX, sIt, sNegC = 32, 33, 35, 36, 37, 38
sQo = [40, 41, 42, 43, 44, 45]
sOo = [46, 47, 48]
sFail = [50, 52]
sTmp = 54
NT = " nt" if OPT["nt"] else ""

STAGE = 0x20000


def sbuf(par, t):
    return SB[(t + par) & 1]


def qk(par, t, ks):
    return mfma("v", sbuf(par, t), "a", aK(ks), "a", aQ(t, ks), czero=(ks == 0))


def pv(par, t, idx, czero=False):
    kk, db = idx >> 2, idx & 3
    return mfma("v", vO(t, db), "a", aV(idx), "v", sbuf(par, t) + 4 * kk, czero=(czero and kk == 0))


def k_read(ks, imm):
    return Ins(f"ds_read_b128 {rng('a', aK(ks), 4)}, v{vKA[ks]} offset:{imm}", "ds_r", [f"v{vKA[ks]}"], R("a", aK(ks), 4),
               4, ten="K", areg=f"ka{ks}", imm=imm)


def v_read(k, imm0):
    idx, half = k >> 1, k & 1
    kk, db = idx >> 2, idx & 3
    imm = imm0 + 4096 * kk + 2048 * half
    return Ins(f"ds_read_b64_tr_b16 {rng('a', aV(idx) + 2 * half, 2)}, v{vVA[db]} offset:{imm}", "ds_r", [f"v{vVA[db]}"],
               R("a", aV(idx) + 2 * half, 2), 4, ten="V", areg=f"va{db}", imm=imm)


def dma(ten, imm, soff=sOff):
    srd, vo = (SRD_K, vDK) if ten == "K" else (SRD_V, vDV)
    o = f" offset:{imm}" if imm else ""
    return Ins(f"buffer_load_dwordx4 v{vo}, {rng('s', srd, 4)}, s{soff} offen{o}{NT} lds", "dma",
               [f"v{vo}", f"s{soff}", "m0"] + R("s", srd, 4), [], 12, ten=ten, imm=imm, soff=f"s{soff}")


def m0_xor(lit):
    def sim(st): st["m0"] ^= lit
    return salu(f"s_xor_b32 m0, m0, 0x{lit:x}", ["m0"], ["m0", "scc"], sim=sim)


def m0_next():
    def sim(st): st["m0"] ^= st["maskx"]
    return salu(f"s_xor_b32 m0, m0, s{sMaskX}", ["m0", f"s{sMaskX}"], ["m0", "scc"], sim=sim)


def maskx_toggle():
    def sim(st): st["maskx"] ^= 0xC000
    return salu(f"s_xor_b32 s{sMaskX}, s{sMaskX}, 0xc000", [f"s{sMaskX}"], [f"s{sMaskX}", "scc"], sim=sim)


def mask_toggle():
    def sim(st): st["mask"] ^= 0xC000
    return salu(f"s_xor_b32 s{sMask}, s{sMask}, 0xc000", [f"s{sMask}"], [f"s{sMask}", "scc"], sim=sim)


def off_add():
    def sim(st): st[f"s{sOff}"] += 8192
    return salu(f"s_add_u32 s{sOff}, s{sOff}, 0x2000", [f"s{sOff}"], [f"s{sOff}", "scc"], sim=sim)


def addr_xor(kind, k):
    r = (vKA if kind == "ka" else vVA)[k]
    def sim(st): st[f"{kind}{k}"] ^= st["mask"]
    return valu(f"v_xor_b32 v{r}, s{sMask}, v{r}", [f"v{r}", f"s{sMask}"], [f"v{r}"], sim=sim)


def q_load(t, n, head):
    so = sQo[2 * t + (n >> 2)]
    imm = (n & 3) * 1024
    o = f" offset:{imm}" if imm else ""
    return Ins(f"buffer_load_dwordx4 {rng('a', aQS(t, n), 4)}, v{vQG}, {rng('s', SRD_Q, 4)}, s{so} offen{o}{NT}", "vld",
               [f"v{vQG}", f"s{so}"] + R("s", SRD_Q, 4), R("a", aQS(t, n), 4), 10)


def q_write(t, n, areg):
    return Ins(f"ds_write_b128 v{areg}, {rng('a', aQS(t, n), 4)} offset:{n * 1024}", "ds_w",
               [f"v{areg}"] + R("a", aQS(t, n), 4), [], 20)


def q_read(t, ks, areg):
    return Ins(f"ds_read_b128 {rng('a', aQ(t, ks), 4)}, v{areg}", "ds_r", [f"v{areg}"], R("a", aQ(t, ks), 4), 4)


def o_store(t, m):
    b = vO(t, m >> 1) + 8 * (m & 1)
    o = f" offset:{m * 32}" if m else ""
    return Ins(f"buffer_store_dwordx4 {rng('v', b, 4)}, v{vOS}, {rng('s', SRD_O, 4)}, s{sOo[t]} offen{o}", "vst",
               [f"v{vOS}", f"s{sOo[t]}"] + R("s", SRD_O, 4) + R("v", b, 4), [], 16, data=R("v", b, 4))


DELTA = 3
AHEAD = 1


def sm_ops(par, t, n0, lo, hi, first=False, start_dep=None, relax=0, ahead=99, d0=2):
    S = sbuf(par, t)
    L, M = vL[t], vM[t]
    ops = []
    F, E, A, C = {}, {}, {}, {}
    def inwin(p): return lo <= p < hi
    def clampdl(x): return max(lo, min(x, hi - 1))
    for e in range(16):
        pf, pe, pa = n0 + DELTA + e, n0 + DELTA + 1 + e, n0 + DELTA + 2 + e
        r = f"v{S + e}"
        if inwin(pf):
            deps = []
            if start_dep is not None:
                deps.append((start_dep, 0))
            if e - 1 in F:
                deps.append((F[e - 1], 0))
            F[e] = Op(valu(f"v_fma_f32 {r}, {r}, s{sC}, v{M}", [r, f"s{sC}", f"v{M}"], [r]),
                      max(lo, n0 + d0, pf - ahead), clampdl(pf + relax), deps, prio=pf)
            ops.append(F[e])
        if inwin(pe):
            deps = [(F[e], 1)] if e in F else []
            if e - 1 in E:
                deps.append((E[e - 1], 0))
            E[e] = Op(trans(f"v_exp_f32 {r}, {r}", [r], [r]), max(lo, n0 + 3, pe - ahead), clampdl(pe + relax), deps, prio=pe)
            ops.append(E[e])
        if inwin(pa):
            deps = [(E[e], 1)] if e in E else []
            if e - 1 in A and A[e - 1] is not None:
                deps.append((A[e - 1], 0))
            if first and e == 0:
                A[e] = None
            else:
                src = f"v{S}" if (first and e == 1) else f"v{L}"
                dl = n0 + 24 if e >= 8 else n0 + 24
                A[e] = Op(valu(f"v_add_f32 v{L}, {src}, {r}", [src, r], [f"v{L}"]), max(lo, n0 + 4), clampdl(dl), deps,
                          prio=pa + 2)
                ops.append(A[e])
            if e & 1:
                p = e >> 1
                deps = []
                if e in E: deps.append((E[e], 1))
                if e - 1 in E: deps.append((E[e - 1], 1))
                ap = A.get(1 if (first and p == 0) else p)
                if ap is not None: deps.append((ap, 0))
                if p - 1 in C: deps.append((C[p - 1], 0))
                hard = n0 + 16 if p < 4 else n0 + 20
                C[p] = Op(valu(f"v_cvt_pk_bf16_f32 v{S + p}, v{S + e - 1}, {r}", [f"v{S + e - 1}", r], [f"v{S + p}"]),
                          max(lo, n0 + 4), clampdl(min(hard, pa + relax)), deps, prio=pa)
                ops.append(C[p])
    return ops, A.get(15), C


def max_ops(par, t, n0, dl):
    S, M, T = sbuf(par, t), vM[t], vT[0]
    ops = []
    def chain(ins, mg=0):
        o = Op(ins, n0 + 2, dl, [(ops[-1], mg)] if ops else [], prio=n0 + 2)
        ops.append(o)
    chain(valu(f"v_max3_f32 v{M}, v{S}, v{S + 1}, v{S + 2}", R("v", S, 3), [f"v{M}"]))
    for k in range(6):
        chain(valu(f"v_max3_f32 v{M}, v{M}, v{S + 3 + 2 * k}, v{S + 4 + 2 * k}", [f"v{M}"] + R("v", S + 3 + 2 * k, 2), [f"v{M}"]))
    chain(valu(f"v_max_f32 v{M}, v{M}, v{S + 15}", [f"v{M}", f"v{S + 15}"], [f"v{M}"]))
    chain(valu(f"v_mov_b32 v{T}, v{M}", [f"v{M}"], [f"v{T}"]))
    chain(perm(T, M), 1)
    chain(valu(f"v_max_f32 v{M}, v{M}, v{T}", [f"v{M}", f"v{T}"], [f"v{M}"]))
    chain(valu(f"v_mul_f32 v{M}, s{sNegC}, v{M}", [f"v{M}", f"s{sNegC}"], [f"v{M}"]))
    return ops


def rinv_ops(t, head, rel, dl, dep):
    L, T, RI = vL[t], vT[1], vRI[t]
    ops = []
    def chain(ins, mg=0):
        o = Op(ins, rel, dl, [(ops[-1], mg)] if ops else ([(dep, 0)] if dep else []), prio=rel)
        ops.append(o)
    chain(valu(f"v_mov_b32 v{T}, v{L}", [f"v{L}"], [f"v{T}"]))
    chain(perm(T, L), 1)
    chain(valu(f"v_add_f32 v{T}, v{T}, v{L}", [f"v{T}", f"v{L}"], [f"v{T}"]))
    chain(trans(f"v_rcp_f32 v{RI}, v{T}", [f"v{T}"], [f"v{RI}"]))
    rc = ops[-1]
    chain(valu(f"v_cmp_nge_f32 vcc, 0x{OPT['thr']:x}, v{T}", [f"v{T}"], ["vcc"]))
    f = sFail[head]
    chain(salu(f"s_or_b64 s[{f}:{f + 1}], s[{f}:{f + 1}], vcc", ["vcc", f"s{f}", f"s{f + 1}"], [f"s{f}", f"s{f + 1}", "scc"]), 1)
    return ops, rc


def epi_ops(t, p0, dl_fn, rc, prio0, step, zero=False, prev_store=None):
    ops = []
    last_store = prev_store
    RI = vRI[t]
    prev = None
    for m in range(8):
        db = m >> 1
        b = vO(t, db) + 8 * (m & 1)
        rel = p0 + 4 + db + 2
        dl = dl_fn(db)
        pr = prio0 + step * m
        rel = min(rel, dl)
        cv = []
        for q in range(4):
            for e in range(2):
                r = f"v{b + 2 * q + e}"
                o = Op(valu(f"v_mul_f32 {r}, v{RI}, {r}", [r, f"v{RI}"], [r]), rel, dl,
                       [(rc, 1)] + ([(prev, 0)] if prev else []), prio=pr)
                ops.append(o)
                prev = o
            o = Op(valu(f"v_cvt_pk_bf16_f32 v{b + q}, v{b + 2 * q}, v{b + 2 * q + 1}", R("v", b + 2 * q, 2), [f"v{b + q}"]),
                   rel, dl, [(prev, 0)], prio=pr)
            ops.append(o)
            prev = o
        st = Op(o_store(t, m), rel, dl, [(prev, 0)] + ([(last_store, 0)] if last_store else []), pos="front", prio=pr)
        ops.append(st)
        last_store = st
        if zero:
            for q in range(4):
                z = Op(valu(f"v_mov_b64 v[{b + 2 * q}:{b + 2 * q + 1}], 0", [], R("v", b + 2 * q, 2), cost=5), rel, dl,
                       [(st, 1)], prio=pr + 2)
                ops.append(z)
    return ops, last_store


def qswap_ops(t, relw, relr, dl, prev):
    ops = []
    tw, tr = vT[2], [vT[3], vT[4]]
    last = prev
    lastuse = {}
    def xor(dst, lit, src, rel):
        deps = [(lastuse[dst], 0)] if dst in lastuse else []
        if dst not in lastuse and prev is not None:
            deps.append((prev, 0))
        o = Op(valu(f"v_xor_b32 v{dst}, 0x{lit:x}, v{src}", [f"v{src}"], [f"v{dst}"]), rel, dl, deps)
        ops.append(o)
        return o
    xo = None
    for n in range(8):
        u = n >> 1
        deps = [(last, 0)] if last else []
        areg = vQW
        if u:
            areg = tw
            if not (n & 1):
                xo = xor(tw, u << 6, vQW, relw)
            deps.append((xo, 1))
        o = Op(q_write(t, n, areg), relw, dl, deps, pos="front")
        ops.append(o)
        last = o
        lastuse[areg] = o
    for ks in range(8):
        deps = [(last, 0)]
        areg = vQR
        if ks:
            areg = tr[ks & 1]
            xo = xor(areg, ks << 5, vQR, relw)
            deps.append((xo, 1))
        o = Op(q_read(t, ks, areg), relr, dl, deps, pos="front")
        ops.append(o)
        last = o
        lastuse[areg] = o
    return ops, last


def fixed(ins, g, pos="mid", deps=()):
    return Op(ins, g, g, deps, pos=pos)


def kv_read_ops(par, base, doV=True, doK=True):
    ops = []
    imm = 0 if par else 8192
    if doV:
        for k in range(16):
            ops.append(fixed(v_read(k, imm), base + 8 + k, "front"))
        ops.append(fixed(wait(l=True), base + 23, "end"))
        ops.append(fixed(wait(l=True), base + 27, "end"))
    if doK:
        for ks in range(8):
            ops.append(fixed(k_read(ks, imm), base + 32 + ks, "front"))
    return ops


def dma_ops(par, base, gv=(24, 26), gk=(42, 44), g_m0v=None, g_m0k=None):
    ops = []
    mv = Op(m0_next() if par else m0_xor(0x12000), base + max(gv[0] - 6, 0), base + gv[0] - 1)
    v0 = fixed(dma("V", 0), base + gv[0], "front", [(mv, 1)])
    v1 = fixed(dma("V", 1024), base + gv[1], "front")
    mk = Op(m0_xor(0x10000), base + gv[1], base + gk[0] - 1, [(v1, 0)])
    oa = Op(off_add(), base + gv[1], base + gk[0] - 1, [(v1, 0)])
    k0 = fixed(dma("K", 0), base + gk[0], "front", [(mk, 1), (oa, 1)])
    k1 = fixed(dma("K", 1024), base + gk[1], "front")
    ops += [mv, v0, v1, mk, oa, k0, k1]
    if par:
        ops.append(Op(maskx_toggle(), base + gv[0] - 1, base + 47, [(mv, 0)]))
    return ops, mv, k1


def xor_ops(par, base):
    ops = []
    if par:
        prev = None
        xs = []
        for k in range(8):
            o = Op(addr_xor("ka", k), base + 1, base + 30, prio=base + 2 + k)
            xs.append(o)
        ops += xs
        ops.append(Op(mask_toggle(), base + 1, base + 47, [(x, 0) for x in xs], prio=base + 31))
    else:
        for k in range(4):
            ops.append(Op(addr_xor("va", k), base + 24, base + 46, prio=base + 28 + 2 * k))
    return ops


def block_mf(par, first=False, noprev=False):
    mf = []
    mf += [qk(par, 0, k) for k in range(8)]
    mf += [None] * 8 if noprev else [pv(par ^ 1, 2, i) for i in range(8)]
    mf += [qk(par, 1, k) for k in range(8)]
    mf += [pv(par, 0, i, czero=first) for i in range(8)]
    mf += [qk(par, 2, k) for k in range(8)]
    mf += [pv(par, 1, i, czero=first) for i in range(8)]
    return mf


def sched_auto(mf, make_ops, name, base_budget=None, lo=24, hi=400):
    best = None
    for B in range(lo, hi, 4):
        ops = make_ops()
        bud = [(B if mf[g] is not None else B + 8) - (base_budget[g] if base_budget else 0) for g in range(len(mf))]
        out, est, loads = schedule(mf, ops, bud, name=name)
        if best is None or est <= best[1] + 8:
            best = (out, est, loads, B)
        if max(loads[g] - bud[g] for g in range(len(mf))) <= 0:
            break
    if VERB:
        print(f"; {name}: budget {best[3]} est {best[1]} loads {best[2]}", file=sys.stderr)
    return best[0]


segs = {}

def steady_ops(par, base, bar_at0):
    ops = []
    o, _, _ = sm_ops(par ^ 1, 2, base + 39 - 48, base, base + 48, relax=1, ahead=AHEAD)
    ops += o
    for t in range(3):
        o, _, _ = sm_ops(par, t, base + 16 * t + 7, base, base + 48, relax=1, ahead=AHEAD, d0=3)
        ops += o
    ops += kv_read_ops(par, base)
    o, _, _ = dma_ops(par, base)
    ops += o
    ops += xor_ops(par, base)
    if bar_at0:
        ops.append(fixed(bar(), base + 0, "front"))
    return ops


def it_inc():
    return salu(f"s_add_u32 s{sIt}, s{sIt}, 1", [f"s{sIt}"], [f"s{sIt}", "scc"])


QG = OPT["qglue"]
IT40 = {QG + 1, QG + 2, QG + 3, 8, 9, 10} - {7}
IT16 = set(range(0, 15)) - IT40 - {7}
DIRECT16 = sum(1 << i for i in IT16 if i != 0 and i != QG + 1 and i != 8)
DIRECT40 = sum(1 << i for i in IT40 if i != QG + 1 and i != 8)


def build_loop():
    mf = block_mf(1) + block_mf(0)
    ops = steady_ops(1, 0, True) + steady_ops(0, 48, False)
    ops.append(fixed(wait(l=True), 47, "end"))
    ops.append(Op(it_inc(), 50, 80))
    bc = salu(f"s_bitcmp1_b32 0x{DIRECT16:x}, s{sIt}", [f"s{sIt}"], ["scc"], scc_id="loop")
    ops.append(fixed(bc, 95, "end"))
    bud = [24] * 96
    bud[0] = 24
    bud[95] = 8
    out, est, loads = schedule(mf, ops, bud, name="loop")
    print(f"; loop est {est} loads {loads}", file=sys.stderr)
    segs["top16"] = [label("L_top16"), wait(v=True, pre=True)]
    segs["body"] = [label("L_top40"), wait(v=True, l=True, pre=True)] + out + [
        raw("s_cbranch_scc1 L_top16", kind="branch", rd=["scc"], scc_from="loop")]
    segs["disp40"] = [salu(f"s_bitcmp1_b32 0x{DIRECT40:x}, s{sIt}", [f"s{sIt}"], ["scc"]),
                      raw("s_cbranch_scc1 L_top40", kind="branch", rd=["scc"])]
    segs["disp_t"] = [salu(f"s_cmp_eq_u32 s{sIt}, 7", [f"s{sIt}"], ["scc"]),
                      raw("s_cbranch_scc1 L_trans", kind="branch", rd=["scc"])]
    segs["disp_e"] = [salu(f"s_cmp_eq_u32 s{sIt}, 15", [f"s{sIt}"], ["scc"]),
                      raw("s_cbranch_scc1 L_tail", kind="branch", rd=["scc"])]
    g = []
    for k in range(6):
        g.append(salu(f"s_add_u32 s{sQo[k]}, s{sQo[k]}, 0x18000", [f"s{sQo[k]}"], [f"s{sQo[k]}", "scc"]))
    for t in range(3):
        for n in range(8):
            g.append(q_load(t, n, 1))
    g.append(raw("s_branch L_top40", kind="branch"))
    segs["glue"] = g


def build_first():
    par = 0
    mf = block_mf(0, first=True, noprev=True)

    def mk():
        ops = []
        for t in range(3):
            n0 = 16 * t + 7
            mx = max_ops(par, t, n0, min(n0 + 8, 46))
            ops += mx
            o, _, _ = sm_ops(par, t, n0, 0, 48, first=True, start_dep=mx[-1], relax=6)
            ops += o
        w1 = fixed(wait(v=True), 7, "end")
        q1, last = qswap_ops(1, 8, 8, 14, None)
        q1[0].deps.append((w1, 1))
        ops += [w1] + q1
        ops.append(fixed(wait(l=True), 15, "end"))
        wv = fixed(wait(v=True, pre=True), 16, "end")
        bv = fixed(bar(), 17, "front")
        ops += [wv, bv]
        prev = bv
        for k in range(16):
            o = Op(v_read(k, 8192), 17, 22, [(prev, 0)], pos="front")
            ops.append(o)
            prev = o
        ops.append(fixed(wait(l=True), 23, "end"))
        w2 = fixed(wait(v=True), 23, "end")
        q2, last = qswap_ops(2, 24, 24, 30, last)
        q2[0].deps.append((w2, 1))
        ops += [w2] + q2
        ops.append(fixed(wait(l=True), 31, "end"))
        wk = fixed(wait(v=True, pre=True), 39, "end")
        bk = fixed(bar(), 40, "front")
        ops += [wk, bk]
        prev = bk
        for ks in range(8):
            o = Op(k_read(ks, 8192), 40, 44, [(prev, 0)], pos="front")
            ops.append(o)
            prev = o
        ops += xor_ops(0, 0)
        return ops

    segs["first"] = sched_auto(mf, mk, "first")


def build_trans():
    mf = block_mf(1) + block_mf(0, first=True)

    def mk():
        ops = []
        o, _, _ = sm_ops(0, 2, 39 - 48, 0, 96)
        ops += o
        rcs = []
        lastadd = []
        for t in range(3):
            o, la, _ = sm_ops(1, t, 16 * t + 7, 0, 96, relax=2)
            ops += o
            lastadd.append(la)
        ops += kv_read_ops(1, 0) + kv_read_ops(0, 48)
        ops.append(fixed(bar(), 0, "front"))
        ops.append(fixed(wait(l=True), 47, "end"))
        d1, _, k1 = dma_ops(1, 0, gv=(2, 4), gk=(6, 24))
        d2, mv2, k2 = dma_ops(0, 0, gv=(26, 28), gk=(30, 31))
        mv2.rel = 24
        mv2.deps.append((k1, 0))
        ops += d1 + d2
        ops += xor_ops(1, 0) + xor_ops(0, 48)
        prevr = None
        for t in range(3):
            n0 = 16 * t + 7
            r, rc = rinv_ops(t, 0, n0 + 20, n0 + 30, lastadd[t])
            if prevr:
                r[0].deps.append((prevr, 0))
            prevr = r[-1]
            ops += r
            rcs.append((rc, r))
        for t in range(3):
            n0 = 48 + 16 * t + 7
            mx = max_ops(0, t, n0, min(n0 + 8, 94))
            ops += mx
            o, _, _ = sm_ops(0, t, n0, 0, 96, first=True, start_dep=mx[-1], relax=6)
            for x in o:
                if x.ins.text.startswith(f"v_add_f32 v{vL[t]}, v{sbuf(0, t)},"):
                    x.deps.append((rcs[t][1][2], 0))
            ops += o
        st = k2
        e, st = epi_ops(0, 24, lambda db: 48 + 23 + db - 1, rcs[0][0], 34, 3, prev_store=st)
        ops += e
        e, st = epi_ops(1, 40, lambda db: 48 + 39 + db - 1, rcs[1][0], 56, 2, prev_store=st)
        ops += e
        e, st = epi_ops(2, 56, lambda db: 95, rcs[2][0], 74, 2, zero=True, prev_store=st)
        ops += e
        w0 = fixed(wait(v=True), 4, "end")
        q, last = qswap_ops(0, 5, 8, 44, None)
        q[0].deps.append((w0, 1))
        for x in q: x.prio = 12
        ops += [w0] + q
        w1 = Op(wait(v=True), 20, 40, [(last, 0)], pos="end")
        q, last = qswap_ops(1, 21, 24, 60, last)
        q[0].deps.append((w1, 1))
        for x in q: x.prio = 44
        ops += [w1] + q
        ops.append(fixed(wait(l=True), 63, "end"))
        w2 = Op(wait(v=True), 40, 66, [(last, 0)], pos="end")
        q, last = qswap_ops(2, 41, 41, 76, last)
        q[0].deps.append((w2, 1))
        for x in q: x.prio = 68
        ops += [w2] + q
        ops.append(fixed(wait(l=True), 79, "end"))
        ops.append(Op(it_inc(), 50, 90))
        for t in range(3):
            ops.append(Op(salu(f"s_add_u32 s{sOo[t]}, s{sOo[t]}, 0x18000", [f"s{sOo[t]}"], [f"s{sOo[t]}", "scc"]), 95, 95,
                          [(st, 0)], pos="end"))
        return ops

    out = sched_auto(mf, mk, "trans")
    segs["trans"] = [label("L_trans"), wait(v=True, l=True, pre=True)] + out + [raw("s_branch L_top40", kind="branch")]


def build_tail():
    mf = block_mf(1) + [None] * 8 + [pv(1, 2, i) for i in range(8)] + [None] * 24
    G = len(mf)

    def mk():
        ops = []
        o, _, _ = sm_ops(0, 2, 39 - 48, 0, G)
        ops += o
        lastadd = []
        for t in range(3):
            o, la, _ = sm_ops(1, t, 16 * t + 7, 0, G, relax=2)
            ops += o
            lastadd.append(la)
        ops += kv_read_ops(1, 0, doK=False)
        ops.append(fixed(bar(), 0, "front"))
        prevr = None
        rcs = []
        for t in range(3):
            n0 = 16 * t + 7
            r, rc = rinv_ops(t, 1, n0 + 16, n0 + 30, lastadd[t])
            if prevr:
                r[0].deps.append((prevr, 0))
            prevr = r[-1]
            ops += r
            rcs.append(rc)
        e, st = epi_ops(0, 24, lambda db: G - 1, rcs[0], 32, 2)
        ops += e
        e, st = epi_ops(1, 40, lambda db: G - 1, rcs[1], 50, 2, prev_store=st)
        ops += e
        e, st = epi_ops(2, 56, lambda db: G - 1, rcs[2], 66, 2, prev_store=st)
        ops += e
        return ops

    out = sched_auto(mf, mk, "tail", lo=32)
    segs["tail"] = [label("L_tail"), wait(v=True, l=True, pre=True)] + out


def V(text, rd=(), wr=(), **meta):
    return valu(text, rd, wr, **meta)


def S(text, rd=(), wr=(), **meta):
    return salu(text, rd, wr, **meta)


def build_prologue():
    p = []
    a = p.append
    a(S("s_cmp_ge_u32 s2, 0x100", ["s2"], ["scc"]))
    a(raw("s_cbranch_scc1 L_end", kind="branch", rd=["scc"]))
    a(raw("s_load_dwordx8 s[24:31], s[0:1], 0"))
    if OPT["stamp"]:
        a(raw("s_load_dwordx4 s[60:63], s[0:1], 32"))
        a(raw("s_memrealtime s[64:65]"))
        a(raw("s_memtime s[66:67]"))
    a(V("v_lshrrev_b32 v1, 6, v0", ["v0"], ["v1"]))
    a(V("v_and_b32 v2, 63, v0", ["v0"], ["v2"]))
    a(V(f"v_readfirstlane_b32 s{sW}, v1", ["v1"], [f"s{sW}"], readlane=True))
    a(V("v_lshrrev_b32 v3, 4, v2", ["v2"], ["v3"]))
    a(V("v_and_b32 v4, 15, v2", ["v2"], ["v4"]))
    a(V("v_lshlrev_b32 v5, 3, v1", ["v1"], ["v5"]))
    a(V("v_add_u32 v5, v5, v3", ["v5", "v3"], ["v5"]))
    a(V("v_lshlrev_b32 v5, 8, v5", ["v5"], ["v5"]))
    a(V("v_lshl_or_b32 v6, v1, 2, v3", ["v1", "v3"], ["v6"]))
    a(V("v_xor_b32 v6, v6, v4", ["v6", "v4"], ["v6"]))
    a(V(f"v_lshl_add_u32 v{vDK}, v6, 4, v5", ["v6", "v5"], [f"v{vDK}"]))
    a(V("v_lshlrev_b32 v6, 2, v3", ["v3"], ["v6"]))
    a(V("v_xor_b32 v6, v6, v4", ["v6", "v4"], ["v6"]))
    a(V(f"v_lshl_add_u32 v{vDV}, v6, 4, v5", ["v6", "v5"], [f"v{vDV}"]))
    a(V("v_mul_u32_u24 v6, 0x6000, v1", ["v1"], ["v6"]))
    a(V(f"v_lshl_add_u32 v{vQG}, v2, 4, v6", ["v2", "v6"], [f"v{vQG}"]))
    a(S(f"s_lshl_b32 s4, s2, 18", ["s2"], ["s4", "scc"]))
    a(S(f"s_mul_i32 s5, s2, 0x30000", ["s2"], ["s5"]))
    a(S(f"s_lshl_b32 s6, s{sW}, 11", [f"s{sW}"], ["s6", "scc"]))
    def simm0(v):
        def f(st): st["m0"] = v
        return f
    a(S(f"s_add_u32 m0, s6, 0x8000", ["s6"], ["m0", "scc"], sim=simm0(0x8000)))
    def simset(k, v):
        def f(st): st[k] = v
        return f
    a(S(f"s_mov_b32 s{sOff}, 0", [], [f"s{sOff}"], sim=simset(f"s{sOff}", 0)))
    for k in range(6):
        a(S(f"s_mov_b32 s{sQo[k]}, 0x{k * 4096:x}", [], [f"s{sQo[k]}"]))
    for srd, size in ((SRD_K, 0x40000), (SRD_V, 0x40000), (SRD_Q, 0x30000), (SRD_O, 0x30000)):
        a(S(f"s_mov_b32 s{srd + 2}, 0x{size:x}", [], [f"s{srd + 2}"]))
        a(S(f"s_mov_b32 s{srd + 3}, 0x20000", [], [f"s{srd + 3}"]))
    a(raw("s_waitcnt lgkmcnt(0)"))
    for srd, ptr, base in ((SRD_K, 26, 4), (SRD_Q, 24, 5), (SRD_V, 28, 4), (SRD_O, 30, 5)):
        a(S(f"s_add_u32 s{srd}, s{ptr}, s{base}", [], [f"s{srd}", "scc"]))
        a(S(f"s_addc_u32 s{srd + 1}, s{ptr + 1}, 0", ["scc"], [f"s{srd + 1}", "scc"]))
    a(dma("K", 0)); a(dma("K", 1024))
    for n in range(8): a(q_load(0, n, 0))
    a(m0_xor(0x12000))
    for n in range(8): a(q_load(1, n, 0))
    a(dma("V", 0)); a(dma("V", 1024))
    a(m0_xor(0x10000))
    a(off_add())
    for n in range(8): a(q_load(2, n, 0))
    a(dma("K", 0)); a(dma("K", 1024))
    a(S(f"s_mov_b32 s{sMaskX}, 0x1a000", [], [f"s{sMaskX}"], sim=simset("maskx", 0x1A000)))
    for g in range(3):
        for par in (1, 0):
            a(m0_next() if par else m0_xor(0x12000))
            if par: a(maskx_toggle())
            else: a(nop(0))
            a(dma("V", 0)); a(dma("V", 1024))
            a(m0_xor(0x10000))
            a(off_add())
            a(dma("K", 0)); a(dma("K", 1024))
    a(V("v_and_b32 v5, 31, v2", ["v2"], ["v5"]))
    a(V("v_lshrrev_b32 v6, 5, v2", ["v2"], ["v6"]))
    a(V("v_bfe_u32 v7, v5, 3, 2", ["v5"], ["v7"]))
    a(V("v_and_b32 v8, 3, v5", ["v5"], ["v8"]))
    a(V("v_lshl_or_b32 v7, v7, 2, v8", ["v7", "v8"], ["v7"]))
    a(V("v_xor_b32 v7, v7, v6", ["v7", "v6"], ["v7"]))
    a(V("v_lshlrev_b32 v8, 8, v5", ["v5"], ["v8"]))
    a(V("v_lshl_add_u32 v7, v7, 4, v8", ["v7", "v8"], ["v7"]))
    for ks in range(8):
        a(V(f"v_xor_b32 v{vKA[ks]}, 0x{0x8000 | (ks << 5):x}, v7", ["v7"], [f"v{vKA[ks]}"], sim=simset(f"ka{ks}", 0x8000)))
    a(S(f"s_lshl_b32 s6, s{sW}, 13", [f"s{sW}"], ["s6", "scc"]))
    a(S(f"s_add_u32 s6, s6, 0x{STAGE:x}", ["s6"], ["s6", "scc"]))
    a(V(f"v_add_u32 v{vQR}, s6, v7", ["s6", "v7"], [f"v{vQR}"]))
    a(V("v_xor_b32 v9, v4, v3", ["v4", "v3"], ["v9"]))
    a(V("v_lshlrev_b32 v9, 4, v9", ["v9"], ["v9"]))
    a(V("v_lshl_add_u32 v9, v3, 8, v9", ["v3", "v9"], ["v9"]))
    a(V(f"v_add_u32 v{vQW}, s6, v9", ["s6", "v9"], [f"v{vQW}"]))
    a(V("v_mul_u32_u24 v9, 0x6000, v1", ["v1"], ["v9"]))
    a(V("v_add_u32 v9, v9, v8", ["v9", "v8"], ["v9"]))
    a(V(f"v_lshl_add_u32 v{vOS}, v6, 4, v9", ["v6", "v9"], [f"v{vOS}"]))
    a(V("v_bfe_u32 v7, v2, 2, 2", ["v2"], ["v7"]))
    a(V("v_lshl_add_u32 v8, v6, 2, v7", ["v6", "v7"], ["v8"]))
    a(V("v_lshlrev_b32 v8, 8, v8", ["v8"], ["v8"]))
    a(V("v_lshl_add_u32 v8, v7, 6, v8", ["v7", "v8"], ["v8"]))
    a(V("v_bfe_u32 v9, v2, 4, 1", ["v2"], ["v9"]))
    a(V("v_lshl_add_u32 v8, v9, 5, v8", ["v9", "v8"], ["v8"]))
    a(V("v_and_b32 v9, 1, v2", ["v2"], ["v9"]))
    a(V("v_lshl_add_u32 v8, v9, 4, v8", ["v9", "v8"], ["v8"]))
    a(V("v_bfe_u32 v9, v2, 1, 1", ["v2"], ["v9"]))
    a(V("v_lshl_add_u32 v8, v9, 3, v8", ["v9", "v8"], ["v8"]))
    for db in range(4):
        a(V(f"v_xor_b32 v{vVA[db]}, 0x{0x18000 | (db << 6):x}, v8", ["v8"], [f"v{vVA[db]}"], sim=simset(f"va{db}", 0x18000)))
    a(S(f"s_mov_b32 s{sC}, 0x{f2u(CSC):x}", [], [f"s{sC}"]))
    a(S(f"s_mov_b32 s{sNegC}, 0x{f2u(-CSC):x}", [], [f"s{sNegC}"]))
    a(S(f"s_mov_b32 s{sMask}, 0x8000", [], [f"s{sMask}"], sim=simset("mask", 0x8000)))
    a(S(f"s_mov_b32 s{sIt}, 0", [], [f"s{sIt}"]))
    for t in range(3):
        a(S(f"s_mov_b32 s{sOo[t]}, 0x{t * 8192:x}", [], [f"s{sOo[t]}"]))
    for f in sFail:
        a(S(f"s_mov_b64 s[{f}:{f + 1}], 0", [], [f"s{f}", f"s{f + 1}"]))
    for r in range(vO(2, 0), vO(2, 0) + 64, 2):
        a(V(f"v_mov_b64 v[{r}:{r + 1}], 0", [], R("v", r, 2)))
    a(wait(v=True, pre=True))
    a(bar())
    for ks in range(8):
        a(k_read(ks, 0))
    a(wait(v=True))
    tw = vT[2]
    for n in range(8):
        u = n >> 1
        if u and not (n & 1):
            a(V(f"v_xor_b32 v{tw}, 0x{u << 6:x}, v{vQW}", [f"v{vQW}"], [f"v{tw}"]))
        a(q_write(0, n, tw if u else vQW))
    for ks in range(8):
        if ks:
            a(V(f"v_xor_b32 v{vT[3 + (ks & 1)]}, 0x{ks << 5:x}, v{vQR}", [f"v{vQR}"], [f"v{vT[3 + (ks & 1)]}"]))
        a(q_read(0, ks, vT[3 + (ks & 1)] if ks else vQR))
    a(wait(l=True))
    segs["pro"] = p


def stamp_code(slot):
    return []


build_prologue()
build_first()
build_loop()
build_trans()
build_tail()

trace = ["pro", "first"]
for it in range(0, 15):
    if it == 7:
        trace.append("trans")
        continue
    if it in IT16:
        trace.append("top16")
    trace.append("body")
    nx = it + 1
    if (DIRECT16 >> nx) & 1:
        continue
    trace.append("disp40")
    if (DIRECT40 >> nx) & 1:
        continue
    trace.append("disp_t")
    if nx == 7:
        continue
    trace.append("disp_e")
    if nx == 15:
        continue
    assert nx == QG + 1
    trace.append("glue")
trace.append("tail")

nfix = check_hazards(trace, segs, fix_ok={"pro", "first", "trans", "tail"})
check_scc(trace, segs)
mx = derive_waits(trace, segs, {})
print(f"; nops inserted {nfix}, max vmem outstanding {mx}", file=sys.stderr)
for s in ("top16", "body", "trans", "tail"):
    print(s, [i.render().strip() for i in segs[s] if i.kind == "wait"], file=sys.stderr)

ref = open(f"cdna_kernels/{NAME}.s.ref").read()
head = [l for l in ref.splitlines() if l.startswith(";") and "@launch" not in l and "Override" not in l and "grid=ceil" not in l]
out = []
out += head
out.append("; @launch grid=(256,1,1) block=(256,1,1) lds=163840")
out.append('.amdgcn_target "amdgcn-amd-amdhsa--gfx950"')
out.append(".text")
out.append(f".globl {NAME}_kernel")
out.append(".p2align 8")
out.append(f".type {NAME}_kernel,@function")
out.append(f"{NAME}_kernel:")


def emit(s):
    out.append(f"; ---- {s}")
    for i in segs[s]:
        out.append(i.render())


emit("pro")
emit("first")
if OPT["align"]:
    out.append(".p2align 6")
for s in ("top16", "body", "disp40", "disp_t", "disp_e", "glue", "trans", "tail"):
    emit(s)
if OPT["stamp"]:
    out += """    s_waitcnt vmcnt(0)
    s_memrealtime s[68:69]
    s_memtime s[70:71]
    s_waitcnt lgkmcnt(0)
    s_sub_u32 s68, s68, s64
    s_sub_u32 s70, s70, s66
    s_mov_b32 s62, 0x100
    s_mov_b32 s63, 0x20000
    s_lshl_b32 s4, s2, 3
    v_mov_b32 v2, s68
    v_mov_b32 v3, s70
    v_mov_b32 v1, s4
    s_nop 1
    buffer_store_dwordx2 v[2:3], v1, s[60:63], 0 offen""".split("\n")
if OPT["slow"]:
    import slowpath
    out += slowpath.emit(globals())
out.append("L_end:")
out.append("    s_endpgm")
out.append(f""".section .rodata,"a"
.p2align 6
.amdhsa_kernel {NAME}_kernel
  .amdhsa_next_free_vgpr 512
  .amdhsa_next_free_sgpr 96
  .amdhsa_accum_offset 256
  .amdhsa_group_segment_fixed_size 0
  .amdhsa_kernarg_size 48
  .amdhsa_user_sgpr_count 2
  .amdhsa_user_sgpr_kernarg_segment_ptr 1
  .amdhsa_system_sgpr_workgroup_id_x 1
  .amdhsa_float_denorm_mode_32 3
.end_amdhsa_kernel""")
open(sys.argv[1], "w").write("\n".join(out) + "\n")
```

```python
import heapq


def R(f, lo, n=1):
    return [f"{f}{lo + i}" for i in range(n)]


def rng(f, lo, n):
    return f"{f}{lo}" if n == 1 else f"{f}[{lo}:{lo + n - 1}]"


class Ins:
    __slots__ = ("text", "kind", "rd", "wr", "cost", "meta", "n_v", "n_l")

    def __init__(self, text, kind, rd=(), wr=(), cost=4, **meta):
        self.text = text
        self.kind = kind
        self.rd = list(rd)
        self.wr = list(wr)
        self.cost = cost
        self.meta = meta
        self.n_v = None
        self.n_l = None

    def render(self):
        if self.kind == "wait":
            parts = []
            if self.meta.get("v"):
                n = self.n_v if self.n_v is not None else 63
                parts.append(f"vmcnt({n})")
            if self.meta.get("l"):
                n = self.n_l if self.n_l is not None else 15
                parts.append(f"lgkmcnt({n})")
            return "    s_waitcnt " + " ".join(parts)
        if self.kind == "label":
            return self.text
        return "    " + self.text


def mfma(df, d, af, a, bf, b, czero=False):
    D = R(df, d, 16)
    c = "0" if czero else rng(df, d, 16)
    i = Ins(f"v_mfma_f32_32x32x16_bf16 {rng(df, d, 16)}, {rng(af, a, 4)}, {rng(bf, b, 4)}, {c}", "mfma",
            rd=R(af, a, 4) + R(bf, b, 4) + ([] if czero else D), wr=D, cost=8)
    i.meta["ab"] = R(af, a, 4) + R(bf, b, 4)
    i.meta["c"] = [] if czero else D
    return i


def mfma16(df, d, af, a, bf, b, czero=False):
    D = R(df, d, 4)
    c = "0" if czero else rng(df, d, 4)
    i = Ins(f"v_mfma_f32_16x16x32_bf16 {rng(df, d, 4)}, {rng(af, a, 4)}, {rng(bf, b, 4)}, {c}", "mfma",
            rd=R(af, a, 4) + R(bf, b, 4) + ([] if czero else D), wr=D, cost=8)
    i.meta["ab"] = R(af, a, 4) + R(bf, b, 4)
    i.meta["c"] = [] if czero else D
    i.meta["passes"] = 4
    return i


def perm16(a, b):
    return Ins(f"v_permlane16_swap_b32 v{a}, v{b}", "perm", [f"v{a}", f"v{b}"], [f"v{a}", f"v{b}"], 8)


SCALAR_KINDS = ("salu", "wait", "nop")


def valu(text, rd, wr, cost=4, **meta):
    return Ins(text, "valu", rd, wr, cost, **meta)


def trans(text, rd, wr):
    return Ins(text, "trans", rd, wr, 8)


def perm(a, b):
    return Ins(f"v_permlane32_swap_b32 v{a}, v{b}", "perm", [f"v{a}", f"v{b}"], [f"v{a}", f"v{b}"], 8)


def salu(text, rd, wr, **meta):
    return Ins(text, "salu", rd, wr, 4, **meta)


def wait(v=False, l=False, **meta):
    return Ins("", "wait", cost=4, v=v, l=l, **meta)


def bar():
    return Ins("s_barrier", "bar", cost=12)


def label(name):
    return Ins(name + ":", "label", cost=0)


def nop(n):
    return Ins(f"s_nop {n}", "nop", cost=4 * (n + 1), n=n)


def raw(text, cost=4, kind="raw", rd=(), wr=(), **meta):
    return Ins(text, kind, rd, wr, cost, **meta)


RANK = dict(pre=0, front=1, mid=2, end=3)


class Grp:
    def __init__(self, items):
        self.items = list(items)
        self.cost = sum(i.cost for i in self.items)
        self.text = "; ".join(i.text for i in self.items)


class Op:
    __slots__ = ("ins", "rel", "dl", "deps", "pos", "gap", "seq", "prio")

    def __init__(self, ins, rel, dl, deps=(), pos="mid", prio=None):
        self.ins = ins
        self.rel = rel
        self.dl = dl
        self.deps = list(deps)
        self.pos = pos
        self.gap = None
        self.prio = prio


def schedule(mf, ops, budget, verbose=False, name="", L=32):
    G = len(mf)
    for k, o in enumerate(ops):
        o.seq = k
        o.gap = None
        assert o.rel <= o.dl, (name, o.ins.text, o.rel, o.dl)
        assert o.dl < G, (name, o.ins.text, o.dl, G)
    changed = True
    while changed:
        changed = False
        for o in ops:
            for d, mg in o.deps:
                m = mg
                if RANK[o.pos] < RANK[d.pos]:
                    m = max(m, 1)
                if d.dl > o.dl - m:
                    d.dl = o.dl - m
                    changed = True
    for o in ops:
        assert o.rel <= o.dl, ("infeasible", name, o.ins.text, o.rel, o.dl)
    gaps = [dict(pre=[], front=[], mid=[], end=[]) for _ in range(G)]
    rank = dict(pre=0, front=1, mid=2, end=3)
    left = list(ops)
    loads = []
    for g in range(G):
        rem = budget[g]
        fixed = [o for o in left if o.rel == o.dl == g]

        def ready(o):
            if o.rel > g:
                return False
            for d, mg in o.deps:
                m = mg
                if RANK[o.pos] < RANK[d.pos]:
                    m = max(m, 1)
                if d.gap is None or d.gap + m > g:
                    return False
            return True

        must = sum(o.ins.cost for o in left if o.dl == g and o.pos != "pre")
        spare = rem - must
        used = 0
        while True:
            cand = [o for o in left if ready(o)]
            cand.sort(key=lambda o: (o.dl if o.prio is None else min(o.dl, o.prio), o.seq))
            pick = None
            for o in cand:
                if o.dl == g:
                    pick = o
                    break
            if pick is None:
                for o in cand:
                    c = 0 if (o.pos == "pre" and not gaps[g]["pre"] and mf[g] is not None) else o.ins.cost
                    if o.pos == "pre" and c and mf[g] is not None:
                        continue
                    if c <= spare:
                        pick = o
                        spare -= c
                        break
            if pick is None:
                break
            pick.gap = g
            if not (pick.pos == "pre" and not gaps[g]["pre"] and mf[g] is not None):
                used += pick.ins.cost
            gaps[g][pick.pos].append(pick)
            left.remove(pick)
        late = [o for o in left if o.dl <= g]
        assert not late, ("missed deadline", name, g, [o.ins.text for o in late])
        loads.append(used)
    assert not left
    out = []
    for g in range(G):
        if mf[g] is not None:
            out.append(mf[g])
        for p in ("pre", "front", "mid", "end"):
            for o in gaps[g][p]:
                out += o.ins.items if isinstance(o.ins, Grp) else [o.ins]
    est = sum(max(L if mf[g] is not None else 0, loads[g] + (8 if mf[g] is not None else 0)) for g in range(G))
    if verbose:
        print(f"; sched {name}: est {est} cyc, loads {loads}")
    return out, est, loads


VALU_KINDS = ("valu", "trans", "perm")
MEM_KINDS = ("ds_r", "ds_w", "dma", "vld", "vst")


def states(ins):
    if ins.kind == "label":
        return 0
    if ins.kind == "nop":
        return ins.meta["n"] + 1
    return 1


def need_states(prod, cons):
    n = 0
    pw, pr = set(prod.wr), set(prod.rd)
    cw, cr = set(cons.wr), set(cons.rd)
    pk, ck = prod.kind, cons.kind
    if pk == "mfma":
        four = prod.meta.get("passes") == 4
        raw_, ovl, war = (8, 6, 3) if four else (12, 10, 7)
        if ck == "mfma":
            if pw & set(cons.meta["ab"]):
                n = max(n, raw_)
            c = set(cons.meta["c"])
            if pw & c and not (c == pw):
                n = max(n, ovl)
            if pw & cw and cw != pw:
                n = max(n, raw_)
        elif ck in VALU_KINDS or ck in MEM_KINDS:
            if pw & (cr | cw):
                n = max(n, raw_)
            if ck in VALU_KINDS and set(prod.meta["c"]) & cw:
                n = max(n, war)
    if pk in VALU_KINDS:
        vw = {r for r in pw if r[0] in "va" and r != "vcc"}
        sw = {r for r in pw if r[0] == "s" or r == "vcc"}
        if ck == "mfma" and vw & cr:
            n = max(n, 2)
        if ck == "perm" and vw & cr:
            n = max(n, 2)
        if pk == "trans" and ck in ("valu", "perm") and vw & cr:
            n = max(n, 1)
        if cons.meta.get("readlane") and vw & cr:
            n = max(n, 1)
        if sw & cr:
            if ck in VALU_KINDS:
                n = max(n, 2)
            if ck in ("dma", "vld", "vst"):
                n = max(n, 5)
            if ck == "salu":
                n = max(n, 2)
    if pk == "salu" and "m0" in pw and ck == "dma":
        n = max(n, 1)
    if pk == "vst" and (ck in VALU_KINDS or ck in ("ds_r", "vld", "mfma")):
        if set(prod.meta["data"]) & cw:
            n = max(n, 2)
    return n


def check_hazards(trace, segs, fix_ok):
    total = 0
    while True:
        lin = []
        for s in trace:
            lin += [(s, i) for i in segs[s]]
        bad = None
        for k, (s, c) in enumerate(lin):
            if c.kind in ("label", "nop", "wait", "bar", "branch"):
                continue
            dist = 0
            j = k - 1
            while j >= 0 and dist < 12:
                p = lin[j][1]
                n = need_states(p, c)
                if n > dist:
                    bad = (s, c, p, n - dist)
                    break
                dist += states(p)
                j -= 1
            if bad:
                break
        if not bad:
            return total
        s, c, p, short = bad
        idx = next(i for i, x in enumerate(segs[s]) if x is c)
        j = k - 1
        placed = False
        while j >= 0:
            sj, x = lin[j]
            nx = lin[j + 1]
            if x.kind == "mfma" and nx[0] == sj and nx[1].kind not in SCALAR_KINDS + ("dma", "bar", "branch", "vst", "vld", "raw"):
                at = next(i for i, y in enumerate(segs[sj]) if y is x)
                segs[sj].insert(at + 1, nop(0))
                placed = True
                break
            if x is p:
                break
            j -= 1
        if placed:
            continue
        if s not in fix_ok:
            raise RuntimeError(f"hazard in {s}: '{p.text}' -> '{c.text}' short by {short}")
        segs[s].insert(idx, nop(short - 1))
        total += short


def check_scc(trace, segs):
    lin = []
    for s in trace:
        lin += segs[s]
    last = None
    for i in lin:
        if "scc" in i.rd:
            want = i.meta.get("scc_from")
            assert last is not None and (want is None or last.meta.get("scc_id") == want), (i.text, last and last.text)
        if "scc" in i.wr:
            last = i


def derive_waits(trace, segs, sim_init):
    lin = []
    for s in trace:
        lin += segs[s]
    for i in lin:
        if i.kind == "wait":
            i.n_v = None
            i.n_l = None
    st = dict(sim_init)
    vops = []
    lops = []
    vpos, lpos = {}, {}
    pend_v, pend_l = {}, {}
    slot = {}
    last_wv = last_wl = None
    bar_wv = None
    first_pre = None
    bar_l_done = -1
    done_v = done_l = -1
    reqs = []
    qch = {}

    def req(w, issued, opn, cls, why):
        nonlocal done_v, done_l
        assert w is not None and opn < issued, ("no wait covers", why)
        n = issued - 1 - opn
        if cls == "v":
            n = min(n, 63)
            w.n_v = n if w.n_v is None else min(w.n_v, n)
        else:
            n = min(n, 15)
            w.n_l = n if w.n_l is None else min(w.n_l, n)

    bar_wl = None
    for k, i in enumerate(lin):
        sim = i.meta.get("sim")
        touched = set(i.rd) | set(i.wr)
        if i.kind not in ("wait", "label", "bar"):
            for r in touched:
                if r in pend_l:
                    opn = pend_l.pop(r)
                    if not (i.kind == "ds_r" and r in i.wr):
                        req(last_wl[0] if last_wl else None, last_wl[1] if last_wl else 0, opn, "l", (i.text, r))
                if r in pend_v:
                    opn = pend_v.pop(r)
                    req(last_wv[0] if last_wv else None, last_wv[1] if last_wv else 0, opn, "v", (i.text, r))
        if i.kind == "wait":
            if i.meta.get("v"):
                last_wv = (i, len(vops))
                if i.meta.get("pre") and first_pre is None:
                    first_pre = last_wv
            if i.meta.get("l"):
                last_wl = (i, len(lops))
        elif i.kind == "bar":
            bar_wv = first_pre
            first_pre = None
            bar_wl = last_wl
        elif i.kind in ("vld", "vst", "dma"):
            n = len(vops)
            vops.append(k)
            if i.kind == "vld":
                for r in i.wr:
                    pend_v[r] = n
            if i.kind == "dma" and i.meta["ten"] == "Q":
                goff = st[i.meta["soff"]] + i.meta["imm"]
                addr = st["m0"] + i.meta["imm"]
                assert addr - 0x10000 == goff % 0x18000 and goff % 0x18000 < 0x6000, (i.text, hex(addr), hex(goff))
                assert st["qd"] == ((goff % 0x18000) >> 10) & 2, ("q swizzle", i.text)
                qch[goff] = n
            elif i.kind == "dma":
                ten = i.meta["ten"]
                addr = st["m0"] + i.meta["imm"]
                goff = st[i.meta["soff"]] + i.meta["imm"]
                sl = addr // 8192
                blk = goff // 8192
                assert (addr % 8192) == (goff % 8192), (i.text, addr, goff)
                old = slot.get(sl)
                if old is not None and (old["ten"], old["blk"]) != (ten, blk):
                    assert old["nread"] == old["want"] or old["blk"] >= 32, ("overwriting unread slot", i.text, old, blk)
                    if old["lastread"] is not None:
                        req(bar_wl[0], bar_wl[1], old["lastread"], "l", ("war", i.text))
                    old = None
                if old is None:
                    slot[sl] = dict(ten=ten, blk=blk, dma=n, nread=0, want=8 if ten == "K" else 16, lastread=None, ndma=1)
                else:
                    old["dma"] = n
                    old["ndma"] += 1
        elif i.kind in ("ds_r", "ds_w"):
            n = len(lops)
            lops.append(k)
            if i.kind == "ds_r":
                for r in i.wr:
                    pend_l[r] = n
                ten = i.meta.get("ten")
                if ten == "Q":
                    for ch in range(4):
                        req(last_wv[0], last_wv[1], qch[i.meta["qoff"] + 1024 * ch], "v", ("q", i.text))
                if ten in ("K", "V"):
                    addr = st[i.meta["areg"]] + i.meta["imm"]
                    sl = addr // 8192
                    cnt = st.get("cnt" + ten, 0)
                    per = 8 if ten == "K" else 16
                    want_blk = cnt // per
                    st["cnt" + ten] = cnt + 1
                    c = slot.get(sl)
                    assert c is not None and c["ten"] == ten and c["blk"] == want_blk and c["ndma"] == 2, (
                        "wrong slot", i.text, addr, c, want_blk)
                    c["nread"] += 1
                    c["lastread"] = n
                    assert bar_wv is not None
                    req(bar_wv[0], bar_wv[1], c["dma"], "v", ("raw", i.text))
        if sim:
            sim(st)
    for i in lin:
        if i.kind == "wait":
            if i.meta.get("force_v") is not None:
                i.n_v = i.meta["force_v"] if i.n_v is None else min(i.n_v, i.meta["force_v"])
            if i.meta.get("force_l") is not None:
                i.n_l = i.meta["force_l"] if i.n_l is None else min(i.n_l, i.meta["force_l"])
    out = 0
    mx = 0
    for i in lin:
        if i.kind in ("vld", "vst", "dma"):
            out += 1
            mx = max(mx, out)
        if i.kind == "wait" and i.meta.get("v") and i.n_v is not None:
            out = min(out, i.n_v)
    return mx
```

```python
import math
import struct
import sys
from asmlib import *

NAME = "standalone__gqa_softmax__near_ridge"
OPT = dict(nt=1, stamp=0, slow=1, align=1, thr=0x4E800000, stpol=1, ahead=10, spin=0, btail=0, btrans=0, bfirst=0)
for a in sys.argv[2:]:
    k, v = a.split("=")
    OPT[k] = int(v, 0)


def f2u(x):
    return struct.unpack("<I", struct.pack("<f", x))[0]


CSC = math.log2(math.e) / math.sqrt(128.0)
NT = " nt" if OPT["nt"] else ""
STPOL = ["", " nt", " sc1", " sc0 sc1", " nt sc1"][OPT["stpol"]]

def vO(t, db): return 32 * t + 4 * db
SB = [192, 200]
vM = list(range(208, 214))
vKA = 214
vVA = [215, 216]
vQR, vDK, vDV, vQD, vOS, vOW, vOR = 217, 218, 219, 220, 221, 222, 223
vB = 224
vRI = [240, 241]
vT = [242, 243, 244]
def aQ(t, ks): return 16 * t + 4 * ks
def aK(buf, kb, ks): return 96 + 32 * buf + 16 * kb + 4 * ks
def aV(buf, db): return 160 + 32 * buf + 4 * db
def aL(t): return 224 + 4 * t
aONE = 248

sW = 3
SRD_K, SRD_V, SRD_Q, SRD_O = 8, 12, 16, 20
sC, sNegC, sOff, sX, sQm, sQo, sCnt, sPh, sOo = 32, 33, 34, 35, 36, 37, 38, 39, 40
sFail = [50, 52]
KRING, VRING, STAGE = 0, 0x8000, 0x10000
BL, PL = 102, 17


def setter(k, v):
    def f(st): st[k] = v
    return f


def mf_at(X):
    blk, g = divmod(X, BL)
    p, u = divmod(g, PL)
    if u < 8:
        if blk > 31:
            return None
        return mfma16("v", SB[p & 1] + 4 * (u >> 2), "a", aK(blk & 1, u >> 2, u & 3), "a", aQ(p, u & 3), czero=(u & 3) == 0)
    pb, pt = (blk, p - 1) if p else (blk - 1, 5)
    if pb < 0 or pb > 31:
        return None
    z = pb % 16 == 0
    if u < 16:
        return mfma16("v", vO(pt, u - 8), "a", aV(pb & 1, u - 8), "v", SB[pt & 1], czero=z)
    return mfma16("a", aL(pt), "a", aONE, "v", SB[pt & 1], czero=z)


def k_read(x, n):
    kb, ks = n >> 2, n & 3
    imm = 8192 * (x & 1) + 1024 * kb + 256 * ks
    d = aK(x & 1, kb, ks)
    return Ins(f"ds_read_b128 {rng('a', d, 4)}, v{vKA} offset:{imm}", "ds_r", [f"v{vKA}"], R("a", d, 4), 4,
               ten="K", areg="ka", imm=imm)


def v_read(x, n):
    db, half = n >> 1, n & 1
    imm = 8192 * (x & 1) + 1024 * half + 256 * (db >> 1)
    d = aV(x & 1, db) + 2 * half
    return Ins(f"ds_read_b64_tr_b16 {rng('a', d, 2)}, v{vVA[db & 1]} offset:{imm}", "ds_r", [f"v{vVA[db & 1]}"], R("a", d, 2), 4,
               ten="V", areg=f"va{db & 1}", imm=imm)


def q_read(head, t, ks):
    imm = 4096 * t + 256 * ks
    return Ins(f"ds_read_b128 {rng('a', aQ(t, ks), 4)}, v{vQR} offset:{imm}", "ds_r", [f"v{vQR}"], R("a", aQ(t, ks), 4), 4,
               ten="Q", qoff=head * 0x18000 + 4096 * t)


def dma(ten, imm):
    srd, vo, so = dict(K=(SRD_K, vDK, sOff), V=(SRD_V, vDV, sOff), Q=(SRD_Q, vQD, sQo))[ten]
    o = f" offset:{imm}" if imm else ""
    return Ins(f"buffer_load_dwordx4 v{vo}, {rng('s', srd, 4)}, s{so} offen{o}{NT} lds", "dma",
               [f"v{vo}", f"s{so}", "m0"] + R("s", srd, 4), [], 16, ten=ten, imm=imm, soff=f"s{so}")


def m0_for(ten):
    if ten == "K":
        return salu(f"s_mov_b32 m0, s{sX}", [f"s{sX}"], ["m0"], sim=lambda st: st.__setitem__("m0", st["x"]))
    if ten == "V":
        return salu(f"s_xor_b32 m0, s{sX}, 0x8000", [f"s{sX}"], ["m0", "scc"], sim=lambda st: st.__setitem__("m0", st["x"] ^ 0x8000))
    return salu(f"s_mov_b32 m0, s{sQm}", [f"s{sQm}"], ["m0"], sim=lambda st: st.__setitem__("m0", st["qm"]))


def x_step(blk):
    c = 0x6000 if blk & 1 else 0x2000
    return salu(f"s_xor_b32 s{sX}, s{sX}, 0x{c:x}", [f"s{sX}"], [f"s{sX}", "scc"], sim=lambda st: st.__setitem__("x", st["x"] ^ c))


def s_addc(reg, key, c):
    return salu(f"s_add_u32 s{reg}, s{reg}, 0x{c:x}", [f"s{reg}"], [f"s{reg}", "scc"], sim=lambda st: st.__setitem__(key, st[key] + c))


def off_add(): return s_addc(sOff, f"s{sOff}", 8192)
def qm_add(): return s_addc(sQm, "qm", 2048)
def qo_add(): return s_addc(sQo, f"s{sQo}", 2048)


def addr_xor(reg, key):
    return valu(f"v_xor_b32 v{reg}, 0x4000, v{reg}", [f"v{reg}"], [f"v{reg}"], sim=lambda st: st.__setitem__(key, st[key] ^ 0x4000))


def qd_xor():
    return valu(f"v_xor_b32 v{vQD}, 32, v{vQD}", [f"v{vQD}"], [f"v{vQD}"], sim=lambda st: st.__setitem__("qd", st["qd"] ^ 2))


def i_fma(t, e):
    r = f"v{SB[t & 1] + e}"
    return valu(f"v_fma_f32 {r}, {r}, s{sC}, v{vM[t]}", [r, f"s{sC}", f"v{vM[t]}"], [r])


def i_exp(t, e):
    r = f"v{SB[t & 1] + e}"
    return trans(f"v_exp_f32 {r}, {r}", [r], [r])


def i_cvt(t, k):
    S = SB[t & 1]
    return valu(f"v_cvt_pk_bf16_f32 v{S + k}, v{S + 2 * k}, v{S + 2 * k + 1}", R("v", S + 2 * k, 2), [f"v{S + k}"])


T_DS6 = "d f0|e0|d f1|e1|f2 c0|e2|d f3|e3|f4 c1|e4|d f5|e5|f6 c2|e6|d f7|e7|d c3"
T_DMA = "f0 f1|e0|e1|f2 c0|e2|d f3|e3|f4 c1|e4|d f5|e5|f6 c2|e6|d f7|e7|d c3|M"
T_BAR = "d f0|e0|d f1|e1|f2 c0|e2|f3 f4|e3|e4|f5 c1|e5|f6 f7|e6|e7|c2 c3||B"
TEMPL = [T_BAR, T_DMA, T_DMA, T_DMA, T_DMA, T_DS6]


def reads_of(x):
    return [k_read(x, n) for n in range(8)] + [v_read(x, n) for n in range(16)]


def body_loop(withq):
    X0, X1 = BL + 23, 3 * BL + 23
    G = {X: dict(pre=[], front=[], mid=[], end=[]) for X in range(X0, X1)}
    for blk in (1, 2):
        rd = reads_of(blk + 1)
        dm = [dma("V", 0), dma("V", 1024), dma("K", 0), dma("K", 1024)]
        G[BL * blk + 23]["front"].append(bar())
        for tt in range(1, 7):
            t = tt % 6
            s = BL * blk + PL * tt + 7
            for u, cell in enumerate(TEMPL[t].split("|")):
                for w in cell.split():
                    X = s + u
                    if w == "d":
                        G[X]["front"].append(rd.pop(0))
                    elif w == "M":
                        G[X]["front"].append(dm.pop(0))
                    elif w == "B":
                        pass
                    else:
                        G[X]["mid"].append(dict(f=i_fma, e=i_exp, c=i_cvt)[w[0]](t, int(w[1])))
        assert not rd and not dm
        b = BL * blk
        G[b + 38]["pre"].append(m0_for("V"))
        G[b + 72]["pre"].append(wait(l=True))
        G[b + 73]["pre"].append(m0_for("K"))
        G[b + 93]["pre"].append(off_add())
        G[b + 95]["pre"].append(x_step(blk))
        G[b + BL + 22]["pre"].append(wait(v=True, l=True, pre=True))
        if withq:
            G[b + 94]["pre"].append(m0_for("Q"))
            G[b + 97]["front"].append(dma("Q", 0))
            G[b + 99]["front"].append(dma("Q", 1024))
            G[b + 101]["pre"].append(qm_add())
            G[b + 103]["pre"].append(qo_add())
            G[b + 101]["mid"].append(qd_xor())
    G[2 * BL + 60]["mid"].append(addr_xor(vKA, "ka"))
    G[3 * BL + 11]["mid"].append(addr_xor(vVA[0], "va0"))
    G[3 * BL + 13]["mid"].append(addr_xor(vVA[1], "va1"))
    G[3 * BL + 19]["pre"].append(salu(f"s_sub_u32 s{sCnt}, s{sCnt}, 1", [f"s{sCnt}"], [f"s{sCnt}", "scc"]))
    G[3 * BL + 20]["pre"].append(salu(f"s_cmp_lg_u32 s{sCnt}, 0", [f"s{sCnt}"], ["scc"], scc_id="loop"))
    out = []
    est = 0
    for X in range(X0, X1):
        out.append(mf_at(X))
        c = 8
        for p in ("pre", "front", "mid", "end"):
            out += G[X][p]
            c += sum(i.cost for i in G[X][p][(1 if p == "pre" else 0):])
        est += max(16, c)
    print(f"; loop withq={withq} est {est}", file=sys.stderr)
    return out


def fixed(ins, g, pos="mid", deps=()):
    return Op(ins, g, g, deps, pos=pos)


def chain(items, rel, dl, pos="mid", first_deps=(), prio=None, step=0, mg=0):
    ops = []
    for k, ins in enumerate(items):
        deps = [(ops[-1], mg)] if ops else list(first_deps)
        ops.append(Op(ins, rel, dl, deps, pos=pos, prio=None if prio is None else prio + step * k))
    return ops


def sm_flex(t, s, first=False, dl=None, prio_shift=0):
    ops = []
    dl = s + 16 if dl is None else dl
    start = []
    if first:
        S, M, T = SB[t & 1], vM[t], vT[0]
        it = [valu(f"v_max3_f32 v{M}, v{S}, v{S + 1}, v{S + 2}", R("v", S, 3), [f"v{M}"]),
              valu(f"v_max3_f32 v{M}, v{M}, v{S + 3}, v{S + 4}", [f"v{M}"] + R("v", S + 3, 2), [f"v{M}"]),
              valu(f"v_max3_f32 v{M}, v{M}, v{S + 5}, v{S + 6}", [f"v{M}"] + R("v", S + 5, 2), [f"v{M}"]),
              valu(f"v_max_f32 v{M}, v{M}, v{S + 7}", [f"v{M}", f"v{S + 7}"], [f"v{M}"]),
              valu(f"v_mov_b32 v{T}, v{M}", [f"v{M}"], [f"v{T}"])]
        a = chain(it, s + 3, dl, prio=s + prio_shift)
        b = chain([perm16(T, M), valu(f"v_max_f32 v{M}, v{M}, v{T}", [f"v{M}", f"v{T}"], [f"v{M}"]),
                   valu(f"v_mov_b32 v{T}, v{M}", [f"v{M}"], [f"v{T}"])], s + 3, dl, first_deps=[(a[-1], 1)], prio=s + prio_shift)
        c = chain([perm(T, M), valu(f"v_max_f32 v{M}, v{M}, v{T}", [f"v{M}", f"v{T}"], [f"v{M}"]),
                   valu(f"v_mul_f32 v{M}, s{sNegC}, v{M}", [f"v{M}", f"s{sNegC}"], [f"v{M}"])], s + 3, dl,
                  first_deps=[(b[-1], 1)], prio=s + prio_shift)
        ops += a + b + c
        start = [(c[-1], 0)]
    F, E, C = [], [], []
    for e in range(8):
        f = Op(i_fma(t, e), max(0, s if e < 4 else s + 3), dl, start + ([(F[-1], 0)] if F else []), prio=s + 2 * e + prio_shift)
        F.append(f)
        x = Op(i_exp(t, e), max(0, s), dl, [(f, 0)] + ([(E[-1], 0)] if E else []), prio=s + 2 * e + 1 + prio_shift)
        E.append(x)
        ops += [f, x]
        if e & 1:
            c = Op(i_cvt(t, e >> 1), max(0, s), dl, [(x, 1)] + ([(C[-1], 0)] if C else []), prio=s + 2 * e + 2 + prio_shift)
            C.append(c)
            ops.append(c)
    return ops


def o_store(n):
    o = f" offset:{n * 1024}" if n else ""
    return Ins(f"buffer_store_dwordx4 {rng('v', vB + 4 * n, 4)}, v{vOS}, {rng('s', SRD_O, 4)}, s{sOo} offen{o}{STPOL}", "vst",
               [f"v{vOS}", f"s{sOo}"] + R("s", SRD_O, 4) + R("v", vB + 4 * n, 4), [], 20, data=R("v", vB + 4 * n, 4))


class Epi:
    def __init__(self):
        self.last_lds = None
        self.last_store = None
        self.last_mul = [None, None]
        self.last_cmp = None


def epi_flex(ep, head, t, p0, dl_o, dl_st, prio):
    ops = []
    RI, T = vRI[t & 1], vT[1]
    f = sFail[head]
    deps = []
    if ep.last_cmp: deps.append((ep.last_cmp, 0))
    if ep.last_mul[t & 1]: deps.append((ep.last_mul[t & 1], 0))
    dl0 = dl_o(0) - 2
    a = chain([valu(f"v_accvgpr_read_b32 v{T}, a{aL(t)}", [f"a{aL(t)}"], [f"v{T}"]),
               trans(f"v_rcp_f32 v{RI}, v{T}", [f"v{T}"], [f"v{RI}"]),
               valu(f"v_cmp_nge_f32 vcc, 0x{OPT['thr']:x}, v{T}", [f"v{T}"], ["vcc"])], min(p0 + 8 + 3, dl0), dl0, first_deps=deps, prio=prio)
    so = Op(salu(f"s_or_b64 s[{f}:{f + 1}], s[{f}:{f + 1}], vcc", ["vcc", f"s{f}", f"s{f + 1}"], [f"s{f}", f"s{f + 1}", "scc"]),
            a[2].rel, dl_st, [(a[2], 2)], pos="pre", prio=prio)
    ep.last_cmp = so
    ops += a + [so]
    prev = a[1]
    first = True
    for m in range(4):
        dl = dl_o(2 * m)
        for db in (2 * m, 2 * m + 1):
            b = vO(t, db)
            it = [valu(f"v_mul_f32 v{b + k}, v{RI}, v{b + k}", [f"v{b + k}", f"v{RI}"], [f"v{b + k}"]) for k in range(4)]
            it.insert(2, valu(f"v_cvt_pk_bf16_f32 v{b}, v{b}, v{b + 1}", R("v", b, 2), [f"v{b}"]))
            it.append(valu(f"v_cvt_pk_bf16_f32 v{b + 1}, v{b + 2}, v{b + 3}", R("v", b + 2, 2), [f"v{b + 1}"]))
            c = chain(it, a[0].rel, dl, first_deps=[(prev, 1 if first else 0)], prio=prio + 2 + 2 * db)
            first = False
            ops += c
            prev = c[-1]
        b0, b1 = vO(t, 2 * m), vO(t, 2 * m + 1)
        w = Op(Ins(f"ds_write2_b64 v{vOW}, v[{b0}:{b0 + 1}], v[{b1}:{b1 + 1}] offset0:{8 * m} offset1:{8 * m + 4}", "ds_w",
                   [f"v{vOW}"] + R("v", b0, 2) + R("v", b1, 2), [], 20), a[0].rel, dl,
               [(prev, 0)] + ([(ep.last_lds, 0)] if ep.last_lds else []), pos="front", prio=prio + 3 + 4 * m)
        ops.append(w)
        ep.last_lds = w
    ep.last_mul[t & 1] = prev
    rb = []
    for n in range(4):
        deps = [(ep.last_lds, 0)]
        if n == 0 and ep.last_store: deps.append((ep.last_store, 1))
        r = Op(Ins(f"ds_read_b128 {rng('v', vB + 4 * n, 4)}, v{vOR} offset:{1088 * n}", "ds_r", [f"v{vOR}"], R("v", vB + 4 * n, 4), 4),
               a[0].rel, dl_st, deps, pos="front", prio=prio + 18)
        ops.append(r)
        ep.last_lds = r
        rb.append(r)
    wt = Op(wait(l=True), a[0].rel, dl_st, [(rb[-1], 3)], pos="pre", prio=prio + 20)
    ops.append(wt)
    st = chain([o_store(n) for n in range(4)], a[0].rel, dl_st, pos="front", first_deps=[(wt, 0)], prio=prio + 22, step=2, mg=1)
    ops += st
    ad = Op(salu(f"s_add_u32 s{sOo}, s{sOo}, 0x{0x1000 if t < 5 else 0x18000 - 0x5000:x}", [f"s{sOo}"], [f"s{sOo}", "scc"]),
            a[0].rel, dl_st, [(st[-1], 1)], pos="pre", prio=prio + 30)
    ops.append(ad)
    ep.last_store = ad
    return ops


def kv_flex(blk, base, doK=True, doV=True, dodma=True, dma_g=(40, 57, 74, 91), lastgap=10 ** 9):
    ops = []
    b = fixed(bar(), base + 23, "front")
    ops.append(b)
    prev = b
    if doK:
        kr = chain([k_read(blk + 1, n) for n in range(8)], base + 24, base + 70, pos="front", first_deps=[(b, 0)], prio=base + 28, step=4)
        ops += kr
        ops.append(fixed(wait(l=True), base + 90, "pre", [(kr[-1], 1)]))
        prev = kr[-1]
    if doV:
        vr = chain([v_read(blk + 1, n) for n in range(16)], base + 24, base + BL + 10, pos="front", first_deps=[(prev, 0)],
                   prio=base + 62, step=3)
        ops += vr
        last_v = vr[-1]
    if dodma:
        mv = Op(m0_for("V"), base + 24, base + dma_g[0] - 1, pos="pre")
        v0 = fixed(dma("V", 0), base + dma_g[0], "front", [(mv, 1)])
        v1 = fixed(dma("V", 1024), base + dma_g[1], "front")
        mk = Op(m0_for("K"), base + dma_g[1] + 1, base + dma_g[2] - 1, pos="pre")
        k0 = fixed(dma("K", 0), base + dma_g[2], "front", [(mk, 1)])
        k1 = fixed(dma("K", 1024), base + dma_g[3], "front")
        oa = Op(off_add(), base + dma_g[3] + 1, base + BL + 20, pos="pre")
        xs = Op(x_step(blk), base + dma_g[3] + 1, base + BL + 20, pos="pre")
        ops += [mv, v0, v1, mk, k0, k1, oa, xs]
    if blk & 1 == 0:
        if doK:
            ops.append(Op(addr_xor(vKA, "ka"), base + 71, base + BL + 20, [(kr[-1], 0)]))
        if doV:
            for k in range(2):
                ops.append(Op(addr_xor(vVA[k], f"va{k}"), base + 71, base + BL + 21, [(last_v, 0)]))
    if base + BL + 22 <= lastgap:
        ops.append(fixed(wait(v=True, l=True, pre=True), base + BL + 22, "pre"))
    return ops


def sched_auto(mf, make_ops, name, B=None, quiet_gaps=()):
    res = {}
    for b in ([B] if B else range(8, 64, 4)):
        ops = make_ops()
        bud = [(b if mf[g] is not None else b + 8) for g in range(len(mf))]
        for g in quiet_gaps:
            bud[g] = 0
        res[b] = schedule(mf, ops, bud, name=name, L=16)
    lo = min(r[1] for r in res.values())
    b = max(k for k, r in res.items() if r[1] <= lo * 1.01)
    print(f"; {name}: {[(k, r[1]) for k, r in res.items()]}\n;   budget {b} loads {res[b][2]}", file=sys.stderr)
    return res[b][0]


segs = {}


def build_trans():
    X0, X1 = 15 * BL + 23, 17 * BL + 23
    mf = [mf_at(X) for X in range(X0, X1)]
    rel = lambda blk, g: blk * BL + g - X0

    def mk():
        ops = []
        for blk, ts in ((15, range(1, 6)), (16, range(6)), (17, [0])):
            for t in ts:
                s = rel(blk, PL * t + 7)
                ops += sm_flex(t, s, first=(blk == 16), dl=min(s + 16, len(mf) - 2))
        ops += kv_flex(15, rel(15, 0), dma_g=(26, 28, 30, 32))
        ops += kv_flex(16, rel(16, 0), dma_g=(84, 88, 92, 96))
        ep = Epi()
        for t in range(6):
            lo = max(1, rel(15, PL * t + 8))
            w = Op(wait(v=True), lo, rel(16, PL * t) - 8, pos="pre", prio=lo)
            deps = [(w, 0)] + ([(ep.last_lds, 0)] if ep.last_lds else [])
            q = chain([q_read(1, t, ks) for ks in range(4)], lo, rel(16, PL * t) - 6, pos="front", first_deps=deps, prio=lo)
            ep.last_lds = q[-1]
            ops += [w] + q
            ops.append(fixed(wait(l=True), rel(16, PL * t) - 1, "pre", [(q[-1], 1)]))
            if t >= 1:
                u = t - 1
                p0 = rel(15, PL * (u + 1) + 8)
                ops += epi_flex(ep, 0, u, p0, lambda db, u=u: rel(16, PL * (u + 1) + 8 + db) - 1, rel(16, 80) if u < 4 else rel(16, 83), p0 + 11)
        p0 = rel(16, 8)
        ops += epi_flex(ep, 0, 5, p0, lambda db: rel(17, 8 + db) - 1, rel(17, 5), p0 + 11)
        ops.append(Op(salu(f"s_mov_b32 s{sCnt}, 7", [], [f"s{sCnt}"]), 5, 100, pos="pre"))
        ops.append(Op(salu(f"s_mov_b32 s{sPh}, 1", [], [f"s{sPh}"]), 5, 100, pos="pre"))
        return ops

    out = sched_auto(mf, mk, "trans", B=OPT["btrans"], quiet_gaps=(0, rel(16, 22), rel(16, 23), len(mf) - 1))
    segs["trans"] = [label("L_trans")] + out + [raw("s_branch L_loopB", kind="branch")]


def build_tail():
    X0, X1 = 31 * BL + 23, 32 * BL + 17 + 40
    mf = [mf_at(X) for X in range(X0, X1)]
    rel = lambda blk, g: blk * BL + g - X0
    G = len(mf)

    def mk():
        ops = []
        for t in range(1, 6):
            ops += sm_flex(t, rel(31, PL * t + 7))
        ep = Epi()
        for u in range(6):
            p0 = rel(31, PL * (u + 1) + 8)
            ops += epi_flex(ep, 1, u, p0, lambda db: G - 12, G - 1, p0 + 11)
        return ops

    segs["tail"] = [label("L_tail")] + sched_auto(mf, mk, "tail", B=OPT["btail"])


class Stream:
    def __init__(self):
        self.seq = []
        order = "K0 Q0 Q1 V0 Q2 Q3 K1 Q4 V1 Q5 K2 V2 K3 V3".split()
        for w in order:
            for h in range(4 if w[0] == "Q" else 2):
                self.seq.append((w[0], int(w[1]), h))
        self.pos = 0
        self.end = {}
        for k, (ten, x, h) in enumerate(self.seq):
            self.end[ten + str(x)] = k + 1

    def upto(self, n):
        out = []
        while self.pos < min(n, len(self.seq)):
            ten, x, h = self.seq[self.pos]
            self.pos += 1
            if ten == "Q":
                if h in (0, 2):
                    out.append(m0_for("Q"))
                    out.append(nop(0))
                out.append(dma("Q", 1024 * (h & 1)))
                if h & 1:
                    out += [qm_add(), qo_add(), qd_xor()]
            else:
                if h == 0:
                    v = 8192 * x + (VRING if ten == "V" else 0)
                    out.append(salu(f"s_add_u32 m0, s6, 0x{v:x}", ["s6"], ["m0", "scc"], sim=setter("m0", v)))
                    out.append(salu(f"s_mov_b32 s{sOff}, 0x{8192 * x:x}", [], [f"s{sOff}"], sim=setter(f"s{sOff}", 8192 * x)))
                elif self.seq[self.pos - 2][0] != ten:
                    raise AssertionError
                out.append(dma(ten, 1024 * h))
        return out

    def ahead(self, name):
        n = self.end[name] + OPT["ahead"]
        n -= n & 1
        return self.upto(n)


def V(text, rd=(), wr=(), **meta): return valu(text, rd, wr, **meta)
def S(text, rd=(), wr=(), **meta): return salu(text, rd, wr, **meta)


def build_start():
    sm = Stream()
    p = []
    a = p.append
    a(S("s_cmp_ge_u32 s2, 0x100", ["s2"], ["scc"]))
    a(raw("s_cbranch_scc1 L_end", kind="branch", rd=["scc"]))
    a(raw("s_load_dwordx8 s[24:31], s[0:1], 0"))
    if OPT["stamp"]:
        a(raw("s_load_dwordx2 s[60:61], s[0:1], 40"))
        a(raw("s_memrealtime s[64:65]" if OPT["stamp"] == 2 else "s_memtime s[64:65]"))
    if OPT["stamp"] or OPT["spin"]:
        a(raw("s_memrealtime s[56:57]"))
    a(V("v_lshrrev_b32 v1, 6, v0", ["v0"], ["v1"]))
    a(V("v_and_b32 v2, 63, v0", ["v0"], ["v2"]))
    a(V(f"v_readfirstlane_b32 s{sW}, v1", ["v1"], [f"s{sW}"], readlane=True))
    a(V("v_bfe_u32 v3, v2, 2, 2", ["v2"], ["v3"]))
    a(V("v_lshrrev_b32 v4, 4, v2", ["v2"], ["v4"]))
    a(V("v_and_b32 v5, 3, v2", ["v2"], ["v5"]))
    a(V("v_lshlrev_b32 v6, 8, v3", ["v3"], ["v6"]))
    a(V("v_lshl_add_u32 v6, v4, 6, v6", ["v4", "v6"], ["v6"]))
    a(V("v_lshl_add_u32 v7, v1, 11, v6", ["v1", "v6"], ["v7"]))
    a(V("v_and_b32 v8, 2, v1", ["v1"], ["v8"]))
    a(V("v_xor_b32 v8, v8, v5", ["v8", "v5"], ["v8"]))
    a(V(f"v_lshl_add_u32 v{vDK}, v8, 4, v7", ["v8", "v7"], [f"v{vDK}"]))
    a(V("v_mul_u32_u24 v9, 0x6000, v1", ["v1"], ["v9"]))
    a(V("v_add_u32 v6, v6, v9", ["v6", "v9"], ["v6"]))
    a(V(f"v_lshl_add_u32 v{vQD}, v5, 4, v6", ["v5", "v6"], [f"v{vQD}"], sim=setter("qd", 0)))
    a(V("v_lshlrev_b32 v8, 1, v1", ["v1"], ["v8"]))
    a(V("v_and_b32 v8, 2, v8", ["v8"], ["v8"]))
    a(V("v_xor_b32 v8, v8, v5", ["v8", "v5"], ["v8"]))
    a(V(f"v_lshl_add_u32 v{vDV}, v8, 4, v7", ["v8", "v7"], [f"v{vDV}"]))
    a(S("s_lshl_b32 s4, s2, 18", ["s2"], ["s4", "scc"]))
    a(S("s_mul_i32 s5, s2, 0x30000", ["s2"], ["s5"]))
    a(S(f"s_lshl_b32 s6, s{sW}, 11", [f"s{sW}"], ["s6", "scc"]))
    a(S(f"s_mul_i32 s7, s{sW}, 0x6000", [f"s{sW}"], ["s7"]))
    a(S(f"s_add_u32 s7, s7, 0x{STAGE:x}", ["s7"], ["s7", "scc"]))
    a(S(f"s_mov_b32 s{sQm}, s7", ["s7"], [f"s{sQm}"], sim=setter("qm", STAGE)))
    a(S(f"s_mov_b32 s{sQo}, 0", [], [f"s{sQo}"], sim=setter(f"s{sQo}", 0)))
    for srd, size in ((SRD_K, 0x40000), (SRD_V, 0x40000), (SRD_Q, 0x30000), (SRD_O, 0x30000)):
        a(S(f"s_mov_b32 s{srd + 2}, 0x{size:x}", [], [f"s{srd + 2}"]))
        a(S(f"s_mov_b32 s{srd + 3}, 0x20000", [], [f"s{srd + 3}"]))
    a(raw("s_waitcnt lgkmcnt(0)"))
    for srd, ptr, base in ((SRD_K, 26, 4), (SRD_Q, 24, 5), (SRD_V, 28, 4), (SRD_O, 30, 5)):
        a(S(f"s_add_u32 s{srd}, s{ptr}, s{base}", [], [f"s{srd}", "scc"]))
        a(S(f"s_addc_u32 s{srd + 1}, s{ptr + 1}, 0", ["scc"], [f"s{srd + 1}", "scc"]))
    p += sm.upto(12)
    a(V("v_lshlrev_b32 v6, 6, v5", ["v5"], ["v6"]))
    a(V("v_and_b32 v7, 2, v3", ["v3"], ["v7"]))
    a(V("v_xor_b32 v7, v7, v4", ["v7", "v4"], ["v7"]))
    a(V("v_lshl_add_u32 v6, v7, 4, v6", ["v7", "v6"], ["v6"]))
    a(V(f"v_lshl_add_u32 v{vKA}, v3, 11, v6", ["v3", "v6"], [f"v{vKA}"], sim=setter("ka", 0)))
    a(V("v_lshl_add_u32 v6, v3, 10, v6", ["v3", "v6"], ["v6"]))
    a(V(f"v_add_u32 v{vQR}, s7, v6", ["s7", "v6"], [f"v{vQR}"]))
    a(V("v_lshlrev_b32 v6, 11, v4", ["v4"], ["v6"]))
    a(V("v_lshl_add_u32 v6, v3, 6, v6", ["v3", "v6"], ["v6"]))
    a(V("v_and_b32 v7, 1, v4", ["v4"], ["v7"]))
    a(V("v_lshl_add_u32 v6, v7, 5, v6", ["v7", "v6"], ["v6"]))
    a(V("v_lshrrev_b32 v7, 1, v5", ["v5"], ["v7"]))
    a(V("v_lshl_add_u32 v6, v7, 4, v6", ["v7", "v6"], ["v6"]))
    a(V("v_and_b32 v7, 1, v5", ["v5"], ["v7"]))
    a(V("v_lshl_add_u32 v6, v7, 3, v6", ["v7", "v6"], ["v6"]))
    a(V(f"v_xor_b32 v{vVA[0]}, 0x{VRING:x}, v6", ["v6"], [f"v{vVA[0]}"], sim=setter("va0", VRING)))
    a(V(f"v_xor_b32 v{vVA[1]}, 0x{VRING | 32:x}, v6", ["v6"], [f"v{vVA[1]}"], sim=setter("va1", VRING)))
    a(V("v_and_b32 v6, 15, v2", ["v2"], ["v6"]))
    a(V("v_mul_u32_u24 v7, 0x110, v6", ["v6"], ["v7"]))
    a(V("v_lshl_add_u32 v7, v4, 3, v7", ["v4", "v7"], ["v7"]))
    a(V(f"v_add_u32 v{vOW}, s7, v7", ["s7", "v7"], [f"v{vOW}"]))
    a(V("v_mul_u32_u24 v7, 0x110, v4", ["v4"], ["v7"]))
    a(V("v_lshl_add_u32 v7, v6, 4, v7", ["v6", "v7"], ["v7"]))
    a(V(f"v_add_u32 v{vOR}, s7, v7", ["s7", "v7"], [f"v{vOR}"]))
    a(V(f"v_lshl_add_u32 v{vOS}, v2, 4, v9", ["v2", "v9"], [f"v{vOS}"]))
    a(V("v_cmp_eq_u32 vcc, 0, v5", ["v5"], ["vcc"]))
    a(V("v_mov_b32 v7, 0x3f803f80", [], ["v7"]))
    a(S(f"s_mov_b32 s{sC}, 0x{f2u(CSC):x}", [], [f"s{sC}"]))
    a(V("v_cndmask_b32 v7, 0, v7, vcc", ["v7", "vcc"], ["v7"]))
    for k in range(4):
        a(V(f"v_accvgpr_write_b32 a{aONE + k}, v7", ["v7"], [f"a{aONE + k}"]))
    a(S(f"s_mov_b32 s{sNegC}, 0x{f2u(-CSC):x}", [], [f"s{sNegC}"]))
    a(S(f"s_mov_b32 s{sCnt}, 1", [], [f"s{sCnt}"]))
    a(S(f"s_mov_b32 s{sPh}, 0", [], [f"s{sPh}"]))
    a(S(f"s_mov_b32 s{sOo}, 0", [], [f"s{sOo}"]))
    for f in sFail:
        a(S(f"s_mov_b64 s[{f}:{f + 1}], 0", [], [f"s{f}", f"s{f + 1}"]))
    p += sm.ahead("K0")
    a(wait(v=True, pre=True))
    a(bar())
    p += [k_read(0, n) for n in range(8)]
    p += sm.ahead("Q0")
    a(wait(v=True))
    p += [q_read(0, 0, ks) for ks in range(4)]
    a(wait(l=True))
    segs["pro"] = p

    X1 = BL + 23
    mf = [mf_at(X) for X in range(X1)]
    pos0 = sm.pos

    def mk():
        sm.pos = pos0
        ops = []
        for t in range(6):
            ops += sm_flex(t, PL * t + 7, first=True)
        ops += sm_flex(0, BL + 7, dl=X1 - 2)
        def q_event(t, g):
            return fixed(Grp(sm.ahead(f"Q{t}") + [wait(v=True)] + [q_read(0, t, ks) for ks in range(4)]), g, "end")
        ops.append(q_event(1, 14))
        ops.append(fixed(wait(l=True), 16, "end"))
        ops.append(fixed(Grp(sm.ahead("V0") + [wait(v=True, pre=True), bar()] + [v_read(0, n) for n in range(16)]), 19, "end"))
        ops.append(fixed(wait(l=True), 24, "end"))
        for t in (2, 3, 4):
            ops.append(q_event(t, PL * t - 4))
            ops.append(fixed(wait(l=True), PL * t - 1, "end"))
        ev = fixed(Grp(sm.ahead("V1") + [wait(v=True, l=True, pre=True), bar()] + [k_read(1, n) for n in range(8)]), 72, "end")
        ops.append(ev)
        vr = chain([v_read(1, n) for n in range(16)], 73, BL + 10, pos="front", first_deps=[(ev, 1)], prio=74, step=1)
        ops += vr
        ops.append(q_event(5, PL * 5 - 4))
        ops.append(fixed(wait(l=True), PL * 5 - 1, "end"))
        rest = sm.upto(10 ** 6)
        rest += [S(f"s_mov_b32 s{sX}, s6", ["s6"], [f"s{sX}"], sim=setter("x", 0)),
                 S(f"s_mov_b32 s{sOff}, 0x8000", [], [f"s{sOff}"], sim=setter(f"s{sOff}", 0x8000)),
                 S(f"s_mov_b32 s{sQm}, s7", ["s7"], [f"s{sQm}"], sim=setter("qm", STAGE)),
                 S(f"s_mov_b32 s{sQo}, 0x18000", [], [f"s{sQo}"], sim=setter(f"s{sQo}", 0x18000))]
        ops.append(fixed(Grp(rest), 90, "end"))
        ops.append(fixed(m0_for("V"), 92, "pre"))
        ops.append(fixed(dma("V", 0), 94, "front"))
        ops.append(fixed(dma("V", 1024), 98, "front"))
        ops.append(fixed(m0_for("K"), 100, "pre"))
        ops.append(fixed(dma("K", 0), 102, "front"))
        ops.append(fixed(dma("K", 1024), 106, "front"))
        ops.append(fixed(off_add(), 108, "pre"))
        ops.append(fixed(x_step(0), 109, "pre"))
        ops.append(Op(addr_xor(vKA, "ka"), 73, BL + 20))
        for k in range(2):
            ops.append(Op(addr_xor(vVA[k], f"va{k}"), 73, BL + 21, [(vr[-1], 0)]))
        ops.append(fixed(wait(v=True, l=True, pre=True), BL + 22, "pre"))
        return ops

    segs["first"] = sched_auto(mf, mk, "first", B=OPT["bfirst"], quiet_gaps=(X1 - 1,))


def stamp(k):
    return raw(f"s_mem{'real' if OPT['stamp'] == 2 else ''}time s[{64 + 2 * k}:{65 + 2 * k}]")


build_start()
segs["loopB"] = [label("L_loopB")] + body_loop(False) + [raw("s_cbranch_scc1 L_loopB", kind="branch", rd=["scc"], scc_from="loop")]
segs["disp"] = [S(f"s_cmp_lg_u32 s{sPh}, 0", [f"s{sPh}"], ["scc"]), raw("s_cbranch_scc1 L_tail", kind="branch", rd=["scc"])]
segs["toA"] = [S(f"s_mov_b32 s{sCnt}, 6", [], [f"s{sCnt}"])]
segs["loopA"] = [label("L_loopA")] + body_loop(True) + [raw("s_cbranch_scc1 L_loopA", kind="branch", rd=["scc"], scc_from="loop")]
build_trans()
build_tail()

if OPT["stamp"]:
    ib = next(i for i, x in enumerate(segs["pro"]) if x.kind == "bar")
    segs["pro"].insert(ib + 1, stamp(1))
    segs["pro"].append(stamp(2))
    segs["first"].append(stamp(3))
    segs["toA"].insert(0, stamp(4))
    segs["trans"].insert(1, stamp(5))
    segs["trans"].insert(-1, stamp(6))
    segs["tail"].insert(1, stamp(7))
    segs["tail"].append(stamp(8))

trace = ["pro", "first", "loopB", "disp", "toA"] + ["loopA"] * 6 + ["trans"] + ["loopB"] * 7 + ["disp", "tail"]
nfix = check_hazards(trace, segs, fix_ok={"pro", "first", "trans", "tail"})
check_scc(trace, segs)
mx = derive_waits(trace, segs, {})
print(f"; exposed nops {nfix}, max vmem outstanding {mx}", file=sys.stderr)
for s in ("pro", "first", "loopB", "loopA", "trans", "tail"):
    print(s, [i.render().strip()[10:] for i in segs[s] if i.kind == "wait"], file=sys.stderr)

ref = open(f"cdna_kernels/{NAME}.s.ref").read()
out = [l for l in ref.splitlines() if l.startswith(";") and "@launch" not in l and "Override" not in l and "grid=ceil" not in l]
out.append("; @launch grid=(256,1,1) block=(256,1,1) lds=163840")
out.append('.amdgcn_target "amdgcn-amd-amdhsa--gfx950"')
out.append(".text")
out.append(f".globl {NAME}_kernel")
out.append(".p2align 8")
out.append(f".type {NAME}_kernel,@function")
out.append(f"{NAME}_kernel:")


def emit(s):
    out.append(f"; ---- {s}")
    for i in segs[s]:
        out.append(i.render())


for s in ("pro", "first", "loopB", "disp", "toA", "loopA", "trans", "tail"):
    if OPT["align"] and s in ("loopB", "loopA"):
        out.append(".p2align 6" if OPT["align"] == 1 else ".p2align 3")
    emit(s)
if OPT["stamp"]:
    out += """    s_waitcnt vmcnt(0)
    s_memXtime s[82:83]
    s_memrealtime s[58:59]
    s_waitcnt lgkmcnt(0)
    s_mov_b32 s62, 0x10000
    s_mov_b32 s63, 0x20000
    s_lshl_b32 s4, s2, 2
    s_add_u32 s4, s4, s3
    s_lshl_b32 s4, s4, 6
    v_mov_b32 v1, s4""".replace("memX", "memreal" if OPT["stamp"] == 2 else "mem").split("\n")
    for k in range(10):
        out.append(f"    v_mov_b32 v{4 + k}, s{64 + 2 * k}")
    out += """    v_mov_b32 v14, s56
    v_mov_b32 v15, s58
    s_nop 1
    buffer_store_dwordx4 v[4:7], v1, s[60:63], 0 offen
    buffer_store_dwordx4 v[8:11], v1, s[60:63], 0 offen offset:16
    buffer_store_dwordx4 v[12:15], v1, s[60:63], 0 offen offset:32""".split("\n")
if OPT["spin"]:
    out += f"""    s_waitcnt vmcnt(0)
L_spin:
    s_memrealtime s[58:59]
    s_waitcnt lgkmcnt(0)
    s_sub_u32 s58, s58, s56
    s_cmp_lt_u32 s58, {OPT['spin']}
    s_cbranch_scc1 L_spin""".split("\n")
if OPT["slow"]:
    import slowpath
    out += slowpath.emit(globals())
out.append("L_end:")
out.append("    s_endpgm")
out.append(f""".section .rodata,"a"
.p2align 6
.amdhsa_kernel {NAME}_kernel
  .amdhsa_next_free_vgpr 512
  .amdhsa_next_free_sgpr 96
  .amdhsa_accum_offset 256
  .amdhsa_group_segment_fixed_size 0
  .amdhsa_kernarg_size 48
  .amdhsa_user_sgpr_count 2
  .amdhsa_user_sgpr_kernarg_segment_ptr 1
  .amdhsa_system_sgpr_workgroup_id_x 1
  .amdhsa_float_denorm_mode_32 3
.end_amdhsa_kernel""")
open(sys.argv[1], "w").write("\n".join(out) + "\n")
```

```python
import math
import struct
import sys
from asmlib import *

NAME = "standalone__gqa_softmax__near_ridge"
OPT = dict(nt=1, stamp=0, slow=1, align=1, thr=0x4E800000, stpol=1, ahead=10, spin=0, rot=0, pf=0, btail=0, btrans=0, bfirst=0)
for a in sys.argv[2:]:
    k, v = a.split("=")
    OPT[k] = int(v, 0)


def f2u(x):
    return struct.unpack("<I", struct.pack("<f", x))[0]


CSC = math.log2(math.e) / math.sqrt(128.0)
NT = " nt" if OPT["nt"] else ""
STPOL = ["", " nt", " sc1", " sc0 sc1", " nt sc1"][OPT["stpol"]]

def vO(t, db): return 32 * t + 4 * db
SB = [192, 200]
vM = list(range(208, 214))
vKA = 214
vVA = [215, 216]
vQR, vDK, vDV, vQD, vOS, vOW, vOR = 217, 218, 219, 220, 221, 222, 223
vB = 224
vRI = [240, 241]
vT = [242, 243, 244]
def aQ(t, ks): return 16 * t + 4 * ks
def aK(buf, kb, ks): return 96 + 32 * buf + 16 * kb + 4 * ks
def aV(buf, db): return 160 + 32 * buf + 4 * db
def aL(t): return 224 + 4 * t
aONE = 248

sW = 3
SRD_K, SRD_V, SRD_Q, SRD_O = 8, 12, 16, 20
sC, sNegC, sOff, sX, sQm, sQo, sCnt, sPh, sOo = 32, 33, 34, 35, 36, 37, 38, 39, 40
sFail = [50, 52]
sLin, sRot = 41, 42
KRING, VRING, STAGE = 0, 0x8000, 0x10000
BL, PL = 102, 17


def setter(k, v):
    def f(st): st[k] = v
    return f


def mf_at(X):
    blk, g = divmod(X, BL)
    p, u = divmod(g, PL)
    if u < 8:
        if blk > 31:
            return None
        return mfma16("v", SB[p & 1] + 4 * (u >> 2), "a", aK(blk & 1, u >> 2, u & 3), "a", aQ(p, u & 3), czero=(u & 3) == 0)
    pb, pt = (blk, p - 1) if p else (blk - 1, 5)
    if pb < 0 or pb > 31:
        return None
    z = pb % 16 == 0
    if u < 16:
        return mfma16("v", vO(pt, u - 8), "a", aV(pb & 1, u - 8), "v", SB[pt & 1], czero=z)
    return mfma16("a", aL(pt), "a", aONE, "v", SB[pt & 1], czero=z)


def k_read(x, n):
    kb, ks = n >> 2, n & 3
    imm = 8192 * (x & 1) + 1024 * kb + 256 * ks
    d = aK(x & 1, kb, ks)
    return Ins(f"ds_read_b128 {rng('a', d, 4)}, v{vKA} offset:{imm}", "ds_r", [f"v{vKA}"], R("a", d, 4), 4,
               ten="K", areg="ka", imm=imm)


def v_read(x, n):
    db, half = n >> 1, n & 1
    imm = 8192 * (x & 1) + 1024 * half + 256 * (db >> 1)
    d = aV(x & 1, db) + 2 * half
    return Ins(f"ds_read_b64_tr_b16 {rng('a', d, 2)}, v{vVA[db & 1]} offset:{imm}", "ds_r", [f"v{vVA[db & 1]}"], R("a", d, 2), 4,
               ten="V", areg=f"va{db & 1}", imm=imm)


def q_read(head, t, ks):
    imm = 4096 * t + 256 * ks
    return Ins(f"ds_read_b128 {rng('a', aQ(t, ks), 4)}, v{vQR} offset:{imm}", "ds_r", [f"v{vQR}"], R("a", aQ(t, ks), 4), 4,
               ten="Q", qoff=head * 0x18000 + 4096 * t)


def dma(ten, imm):
    srd, vo, so = dict(K=(SRD_K, vDK, sOff), V=(SRD_V, vDV, sOff), Q=(SRD_Q, vQD, sQo))[ten]
    o = f" offset:{imm}" if imm else ""
    return Ins(f"buffer_load_dwordx4 v{vo}, {rng('s', srd, 4)}, s{so} offen{o}{NT} lds", "dma",
               [f"v{vo}", f"s{so}", "m0"] + R("s", srd, 4), [], 16, ten=ten, imm=imm, soff=f"s{so}")


def m0_for(ten):
    if ten == "K":
        return salu(f"s_mov_b32 m0, s{sX}", [f"s{sX}"], ["m0"], sim=lambda st: st.__setitem__("m0", st["x"]))
    if ten == "V":
        return salu(f"s_xor_b32 m0, s{sX}, 0x8000", [f"s{sX}"], ["m0", "scc"], sim=lambda st: st.__setitem__("m0", st["x"] ^ 0x8000))
    return salu(f"s_mov_b32 m0, s{sQm}", [f"s{sQm}"], ["m0"], sim=lambda st: st.__setitem__("m0", st["qm"]))


def x_step(blk):
    c = 0x6000 if blk & 1 else 0x2000
    return salu(f"s_xor_b32 s{sX}, s{sX}, 0x{c:x}", [f"s{sX}"], [f"s{sX}", "scc"], sim=lambda st: st.__setitem__("x", st["x"] ^ c))


def s_addc(reg, key, c):
    return salu(f"s_add_u32 s{reg}, s{reg}, 0x{c:x}", [f"s{reg}"], [f"s{reg}", "scc"], sim=lambda st: st.__setitem__(key, st[key] + c))


def off_add():
    if OPT["rot"]:
        return salu(f"s_add_u32 s{sLin}, s{sLin}, 0x2000", [f"s{sLin}"], [f"s{sLin}", "scc"])
    return s_addc(sOff, f"s{sOff}", 8192)


def off_fin():
    if not OPT["rot"]:
        return None
    return salu(f"s_xor_b32 s{sOff}, s{sLin}, s{sRot}", [f"s{sLin}", f"s{sRot}"], [f"s{sOff}", "scc"],
                sim=lambda st: st.__setitem__(f"s{sOff}", st[f"s{sOff}"] + 8192))
def qm_add(): return s_addc(sQm, "qm", 2048)
def qo_add(): return s_addc(sQo, f"s{sQo}", 2048)


def addr_xor(reg, key):
    return valu(f"v_xor_b32 v{reg}, 0x4000, v{reg}", [f"v{reg}"], [f"v{reg}"], sim=lambda st: st.__setitem__(key, st[key] ^ 0x4000))


def qd_xor():
    return valu(f"v_xor_b32 v{vQD}, 32, v{vQD}", [f"v{vQD}"], [f"v{vQD}"], sim=lambda st: st.__setitem__("qd", st["qd"] ^ 2))


def i_fma(t, e):
    r = f"v{SB[t & 1] + e}"
    return valu(f"v_fma_f32 {r}, {r}, s{sC}, v{vM[t]}", [r, f"s{sC}", f"v{vM[t]}"], [r])


def i_exp(t, e):
    r = f"v{SB[t & 1] + e}"
    return trans(f"v_exp_f32 {r}, {r}", [r], [r])


def i_cvt(t, k):
    S = SB[t & 1]
    return valu(f"v_cvt_pk_bf16_f32 v{S + k}, v{S + 2 * k}, v{S + 2 * k + 1}", R("v", S + 2 * k, 2), [f"v{S + k}"])


T_DS6 = "d f0|e0|d f1|e1|f2 c0|e2|d f3|e3|f4 c1|e4|d f5|e5|f6 c2|e6|d f7|e7|d c3"
T_DMA = "f0 f1|e0|e1|f2 c0|e2|d f3|e3|f4 c1|e4|d f5|e5|f6 c2|e6|d f7|e7|d c3|M"
T_BAR = "d f0|e0|d f1|e1|f2 c0|e2|f3 f4|e3|e4|f5 c1|e5|f6 f7|e6|e7|c2 c3||B"
TEMPL = [T_BAR, T_DMA, T_DMA, T_DMA, T_DMA, T_DS6]


def reads_of(x):
    return [k_read(x, n) for n in range(8)] + [v_read(x, n) for n in range(16)]


def body_loop(withq):
    X0, X1 = BL + 23, 3 * BL + 23
    G = {X: dict(pre=[], front=[], mid=[], end=[]) for X in range(X0, X1)}
    for blk in (1, 2):
        rd = reads_of(blk + 1)
        dm = [dma("V", 0), dma("V", 1024), dma("K", 0), dma("K", 1024)]
        G[BL * blk + 23]["front"].append(bar())
        for tt in range(1, 7):
            t = tt % 6
            s = BL * blk + PL * tt + 7
            for u, cell in enumerate(TEMPL[t].split("|")):
                for w in cell.split():
                    X = s + u
                    if w == "d":
                        G[X]["front"].append(rd.pop(0))
                    elif w == "M":
                        G[X]["front"].append(dm.pop(0))
                    elif w == "B":
                        pass
                    else:
                        G[X]["mid"].append(dict(f=i_fma, e=i_exp, c=i_cvt)[w[0]](t, int(w[1])))
        assert not rd and not dm
        b = BL * blk
        G[b + 38]["pre"].append(m0_for("V"))
        G[b + 72]["pre"].append(wait(l=True))
        G[b + 73]["pre"].append(m0_for("K"))
        G[b + 93]["pre"].append(off_add())
        if OPT["rot"]:
            G[b + 96]["pre"].append(off_fin())
        G[b + 95]["pre"].append(x_step(blk))
        G[b + BL + 22]["pre"].append(wait(v=True, l=True, pre=True))
        if OPT["stamp"] == 2:
            G[b + 25]["pre"].append(raw("s_memrealtime s[84:85]"))
            G[b + 75]["pre"].append(raw("s_waitcnt lgkmcnt(0)"))
            G[b + 92]["pre"].append(raw("s_mov_b32 m0, s86"))
            G[b + 93]["mid"].append(raw("v_writelane_b32 v250, s84, m0"))
            G[b + 98]["pre"].append(raw("s_add_u32 s86, s86, 1"))
        if withq:
            G[b + 94]["pre"].append(m0_for("Q"))
            G[b + 97]["front"].append(dma("Q", 0))
            G[b + 99]["front"].append(dma("Q", 1024))
            G[b + 101]["pre"].append(qm_add())
            G[b + 103]["pre"].append(qo_add())
            G[b + 101]["mid"].append(qd_xor())
    G[2 * BL + 60]["mid"].append(addr_xor(vKA, "ka"))
    G[3 * BL + 11]["mid"].append(addr_xor(vVA[0], "va0"))
    G[3 * BL + 13]["mid"].append(addr_xor(vVA[1], "va1"))
    G[3 * BL + 19]["pre"].append(salu(f"s_sub_u32 s{sCnt}, s{sCnt}, 1", [f"s{sCnt}"], [f"s{sCnt}", "scc"]))
    G[3 * BL + 20]["pre"].append(salu(f"s_cmp_lg_u32 s{sCnt}, 0", [f"s{sCnt}"], ["scc"], scc_id="loop"))
    out = []
    est = 0
    for X in range(X0, X1):
        out.append(mf_at(X))
        c = 8
        for p in ("pre", "front", "mid", "end"):
            out += G[X][p]
            c += sum(i.cost for i in G[X][p][(1 if p == "pre" else 0):])
        est += max(16, c)
    print(f"; loop withq={withq} est {est}", file=sys.stderr)
    return out


def fixed(ins, g, pos="mid", deps=()):
    return Op(ins, g, g, deps, pos=pos)


def chain(items, rel, dl, pos="mid", first_deps=(), prio=None, step=0, mg=0):
    ops = []
    for k, ins in enumerate(items):
        deps = [(ops[-1], mg)] if ops else list(first_deps)
        ops.append(Op(ins, rel, dl, deps, pos=pos, prio=None if prio is None else prio + step * k))
    return ops


def sm_flex(t, s, first=False, dl=None, prio_shift=0):
    ops = []
    dl = s + 16 if dl is None else dl
    start = []
    if first:
        S, M, T = SB[t & 1], vM[t], vT[0]
        it = [valu(f"v_max3_f32 v{M}, v{S}, v{S + 1}, v{S + 2}", R("v", S, 3), [f"v{M}"]),
              valu(f"v_max3_f32 v{M}, v{M}, v{S + 3}, v{S + 4}", [f"v{M}"] + R("v", S + 3, 2), [f"v{M}"]),
              valu(f"v_max3_f32 v{M}, v{M}, v{S + 5}, v{S + 6}", [f"v{M}"] + R("v", S + 5, 2), [f"v{M}"]),
              valu(f"v_max_f32 v{M}, v{M}, v{S + 7}", [f"v{M}", f"v{S + 7}"], [f"v{M}"]),
              valu(f"v_mov_b32 v{T}, v{M}", [f"v{M}"], [f"v{T}"])]
        a = chain(it, s + 3, dl, prio=s + prio_shift)
        b = chain([perm16(T, M), valu(f"v_max_f32 v{M}, v{M}, v{T}", [f"v{M}", f"v{T}"], [f"v{M}"]),
                   valu(f"v_mov_b32 v{T}, v{M}", [f"v{M}"], [f"v{T}"])], s + 3, dl, first_deps=[(a[-1], 1)], prio=s + prio_shift)
        c = chain([perm(T, M), valu(f"v_max_f32 v{M}, v{M}, v{T}", [f"v{M}", f"v{T}"], [f"v{M}"]),
                   valu(f"v_mul_f32 v{M}, s{sNegC}, v{M}", [f"v{M}", f"s{sNegC}"], [f"v{M}"])], s + 3, dl,
                  first_deps=[(b[-1], 1)], prio=s + prio_shift)
        ops += a + b + c
        start = [(c[-1], 0)]
    F, E, C = [], [], []
    for e in range(8):
        f = Op(i_fma(t, e), max(0, s if e < 4 else s + 3), dl, start + ([(F[-1], 0)] if F else []), prio=s + 2 * e + prio_shift)
        F.append(f)
        x = Op(i_exp(t, e), max(0, s), dl, [(f, 0)] + ([(E[-1], 0)] if E else []), prio=s + 2 * e + 1 + prio_shift)
        E.append(x)
        ops += [f, x]
        if e & 1:
            c = Op(i_cvt(t, e >> 1), max(0, s), dl, [(x, 1)] + ([(C[-1], 0)] if C else []), prio=s + 2 * e + 2 + prio_shift)
            C.append(c)
            ops.append(c)
    return ops


def o_store(n):
    o = f" offset:{n * 1024}" if n else ""
    return Ins(f"buffer_store_dwordx4 {rng('v', vB + 4 * n, 4)}, v{vOS}, {rng('s', SRD_O, 4)}, s{sOo} offen{o}{STPOL}", "vst",
               [f"v{vOS}", f"s{sOo}"] + R("s", SRD_O, 4) + R("v", vB + 4 * n, 4), [], 20, data=R("v", vB + 4 * n, 4))


class Epi:
    def __init__(self):
        self.last_lds = None
        self.last_store = None
        self.last_mul = [None, None]
        self.last_cmp = None


def epi_flex(ep, head, t, p0, dl_o, dl_st, prio):
    ops = []
    RI, T = vRI[t & 1], vT[1]
    f = sFail[head]
    deps = []
    if ep.last_cmp: deps.append((ep.last_cmp, 0))
    if ep.last_mul[t & 1]: deps.append((ep.last_mul[t & 1], 0))
    dl0 = dl_o(0) - 2
    a = chain([valu(f"v_accvgpr_read_b32 v{T}, a{aL(t)}", [f"a{aL(t)}"], [f"v{T}"]),
               trans(f"v_rcp_f32 v{RI}, v{T}", [f"v{T}"], [f"v{RI}"]),
               valu(f"v_cmp_nge_f32 vcc, 0x{OPT['thr']:x}, v{T}", [f"v{T}"], ["vcc"])], min(p0 + 8 + 3, dl0), dl0, first_deps=deps, prio=prio)
    so = Op(salu(f"s_or_b64 s[{f}:{f + 1}], s[{f}:{f + 1}], vcc", ["vcc", f"s{f}", f"s{f + 1}"], [f"s{f}", f"s{f + 1}", "scc"]),
            a[2].rel, dl_st, [(a[2], 2)], pos="pre", prio=prio)
    ep.last_cmp = so
    ops += a + [so]
    prev = a[1]
    first = True
    for m in range(4):
        dl = dl_o(2 * m)
        for db in (2 * m, 2 * m + 1):
            b = vO(t, db)
            it = [valu(f"v_mul_f32 v{b + k}, v{RI}, v{b + k}", [f"v{b + k}", f"v{RI}"], [f"v{b + k}"]) for k in range(4)]
            it.insert(2, valu(f"v_cvt_pk_bf16_f32 v{b}, v{b}, v{b + 1}", R("v", b, 2), [f"v{b}"]))
            it.append(valu(f"v_cvt_pk_bf16_f32 v{b + 1}, v{b + 2}, v{b + 3}", R("v", b + 2, 2), [f"v{b + 1}"]))
            c = chain(it, a[0].rel, dl, first_deps=[(prev, 1 if first else 0)], prio=prio + 2 + 2 * db)
            first = False
            ops += c
            prev = c[-1]
        b0, b1 = vO(t, 2 * m), vO(t, 2 * m + 1)
        w = Op(Ins(f"ds_write2_b64 v{vOW}, v[{b0}:{b0 + 1}], v[{b1}:{b1 + 1}] offset0:{8 * m} offset1:{8 * m + 4}", "ds_w",
                   [f"v{vOW}"] + R("v", b0, 2) + R("v", b1, 2), [], 20), a[0].rel, dl,
               [(prev, 0)] + ([(ep.last_lds, 0)] if ep.last_lds else []), pos="front", prio=prio + 3 + 4 * m)
        ops.append(w)
        ep.last_lds = w
    ep.last_mul[t & 1] = prev
    rb = []
    for n in range(4):
        deps = [(ep.last_lds, 0)]
        if n == 0 and ep.last_store: deps.append((ep.last_store, 1))
        r = Op(Ins(f"ds_read_b128 {rng('v', vB + 4 * n, 4)}, v{vOR} offset:{1088 * n}", "ds_r", [f"v{vOR}"], R("v", vB + 4 * n, 4), 4),
               a[0].rel, dl_st, deps, pos="front", prio=prio + 18)
        ops.append(r)
        ep.last_lds = r
        rb.append(r)
    wt = Op(wait(l=True), a[0].rel, dl_st, [(rb[-1], 3)], pos="pre", prio=prio + 20)
    ops.append(wt)
    st = chain([o_store(n) for n in range(4)], a[0].rel, dl_st, pos="front", first_deps=[(wt, 0)], prio=prio + 22, step=2, mg=1)
    ops += st
    ad = Op(salu(f"s_add_u32 s{sOo}, s{sOo}, 0x{0x1000 if t < 5 else 0x18000 - 0x5000:x}", [f"s{sOo}"], [f"s{sOo}", "scc"]),
            a[0].rel, dl_st, [(st[-1], 1)], pos="pre", prio=prio + 30)
    ops.append(ad)
    ep.last_store = ad
    return ops


def kv_flex(blk, base, doK=True, doV=True, dodma=True, dma_g=(40, 57, 74, 91), lastgap=10 ** 9):
    ops = []
    b = fixed(bar(), base + 23, "front")
    ops.append(b)
    prev = b
    if doK:
        kr = chain([k_read(blk + 1, n) for n in range(8)], base + 24, base + 70, pos="front", first_deps=[(b, 0)], prio=base + 28, step=4)
        ops += kr
        ops.append(fixed(wait(l=True), base + 90, "pre", [(kr[-1], 1)]))
        prev = kr[-1]
    if doV:
        vr = chain([v_read(blk + 1, n) for n in range(16)], base + 24, base + BL + 10, pos="front", first_deps=[(prev, 0)],
                   prio=base + 62, step=3)
        ops += vr
        last_v = vr[-1]
    if dodma:
        mv = Op(m0_for("V"), base + 24, base + dma_g[0] - 1, pos="pre")
        v0 = fixed(dma("V", 0), base + dma_g[0], "front", [(mv, 1)])
        v1 = fixed(dma("V", 1024), base + dma_g[1], "front")
        mk = Op(m0_for("K"), base + dma_g[1] + 1, base + dma_g[2] - 1, pos="pre")
        k0 = fixed(dma("K", 0), base + dma_g[2], "front", [(mk, 1)])
        k1 = fixed(dma("K", 1024), base + dma_g[3], "front")
        oa = Op(off_add(), base + dma_g[3] + 1, base + BL + 20, pos="pre")
        xs = Op(x_step(blk), base + dma_g[3] + 1, base + BL + 20, pos="pre")
        ops += [mv, v0, v1, mk, k0, k1, oa, xs]
        if OPT["rot"]:
            ops.append(Op(off_fin(), base + dma_g[3] + 1, base + BL + 21, [(oa, 1)], pos="pre"))
    if blk & 1 == 0:
        if doK:
            ops.append(Op(addr_xor(vKA, "ka"), base + 71, base + BL + 20, [(kr[-1], 0)]))
        if doV:
            for k in range(2):
                ops.append(Op(addr_xor(vVA[k], f"va{k}"), base + 71, base + BL + 21, [(last_v, 0)]))
    if base + BL + 22 <= lastgap:
        ops.append(fixed(wait(v=True, l=True, pre=True), base + BL + 22, "pre"))
    return ops


def sched_auto(mf, make_ops, name, B=None, quiet_gaps=()):
    res = {}
    for b in ([B] if B else range(8, 64, 4)):
        ops = make_ops()
        bud = [(b if mf[g] is not None else b + 8) for g in range(len(mf))]
        for g in quiet_gaps:
            bud[g] = 0
        res[b] = schedule(mf, ops, bud, name=name, L=16)
    lo = min(r[1] for r in res.values())
    b = max(k for k, r in res.items() if r[1] <= lo * 1.01)
    print(f"; {name}: {[(k, r[1]) for k, r in res.items()]}\n;   budget {b} loads {res[b][2]}", file=sys.stderr)
    return res[b][0]


segs = {}


def build_trans():
    X0, X1 = 15 * BL + 23, 17 * BL + 23
    mf = [mf_at(X) for X in range(X0, X1)]
    rel = lambda blk, g: blk * BL + g - X0

    def mk():
        ops = []
        for blk, ts in ((15, range(1, 6)), (16, range(6)), (17, [0])):
            for t in ts:
                s = rel(blk, PL * t + 7)
                ops += sm_flex(t, s, first=(blk == 16), dl=min(s + 16, len(mf) - 2))
        ops += kv_flex(15, rel(15, 0), dma_g=(26, 28, 30, 32))
        ops += kv_flex(16, rel(16, 0), dma_g=(84, 88, 92, 96))
        ep = Epi()
        for t in range(6):
            lo = max(1, rel(15, PL * t + 8))
            w = Op(wait(v=True), lo, rel(16, PL * t) - 8, pos="pre", prio=lo)
            deps = [(w, 0)] + ([(ep.last_lds, 0)] if ep.last_lds else [])
            q = chain([q_read(1, t, ks) for ks in range(4)], lo, rel(16, PL * t) - 6, pos="front", first_deps=deps, prio=lo)
            ep.last_lds = q[-1]
            ops += [w] + q
            ops.append(fixed(wait(l=True), rel(16, PL * t) - 1, "pre", [(q[-1], 1)]))
            if t >= 1:
                u = t - 1
                p0 = rel(15, PL * (u + 1) + 8)
                ops += epi_flex(ep, 0, u, p0, lambda db, u=u: rel(16, PL * (u + 1) + 8 + db) - 1, rel(16, 80) if u < 4 else rel(16, 83), p0 + 11)
        p0 = rel(16, 8)
        ops += epi_flex(ep, 0, 5, p0, lambda db: rel(17, 8 + db) - 1, rel(17, 5), p0 + 11)
        ops.append(Op(salu(f"s_mov_b32 s{sCnt}, 7", [], [f"s{sCnt}"]), 5, 100, pos="pre"))
        ops.append(Op(salu(f"s_mov_b32 s{sPh}, 1", [], [f"s{sPh}"]), 5, 100, pos="pre"))
        return ops

    out = sched_auto(mf, mk, "trans", B=OPT["btrans"], quiet_gaps=(0, rel(16, 22), rel(16, 23), len(mf) - 1))
    segs["trans"] = [label("L_trans")] + out + [raw("s_branch L_loopB", kind="branch")]


def build_tail():
    X0, X1 = 31 * BL + 23, 32 * BL + 17 + 40
    mf = [mf_at(X) for X in range(X0, X1)]
    rel = lambda blk, g: blk * BL + g - X0
    G = len(mf)

    def mk():
        ops = []
        for t in range(1, 6):
            ops += sm_flex(t, rel(31, PL * t + 7))
        ep = Epi()
        for u in range(6):
            p0 = rel(31, PL * (u + 1) + 8)
            ops += epi_flex(ep, 1, u, p0, lambda db: G - 12, G - 1, p0 + 11)
        return ops

    segs["tail"] = [label("L_tail")] + sched_auto(mf, mk, "tail", B=OPT["btail"])


def set_off(v):
    if OPT["rot"]:
        return salu(f"s_xor_b32 s{sOff}, s{sRot}, 0x{v:x}", [f"s{sRot}"], [f"s{sOff}", "scc"], sim=setter(f"s{sOff}", v))
    return salu(f"s_mov_b32 s{sOff}, 0x{v:x}", [], [f"s{sOff}"], sim=setter(f"s{sOff}", v))


class Stream:
    def __init__(self):
        self.seq = []
        order = "K0 Q0 Q1 V0 Q2 Q3 K1 Q4 V1 Q5 K2 V2 K3 V3".split()
        for w in order:
            for h in range(4 if w[0] == "Q" else 2):
                self.seq.append((w[0], int(w[1]), h))
        self.pos = 0
        self.end = {}
        for k, (ten, x, h) in enumerate(self.seq):
            self.end[ten + str(x)] = k + 1

    def upto(self, n):
        out = []
        while self.pos < min(n, len(self.seq)):
            ten, x, h = self.seq[self.pos]
            self.pos += 1
            if ten == "Q":
                if h in (0, 2):
                    out.append(m0_for("Q"))
                    out.append(nop(0))
                out.append(dma("Q", 1024 * (h & 1)))
                if h & 1:
                    out += [qm_add(), qo_add(), qd_xor()]
            else:
                if h == 0:
                    v = 8192 * x + (VRING if ten == "V" else 0)
                    out.append(salu(f"s_add_u32 m0, s6, 0x{v:x}", ["s6"], ["m0", "scc"], sim=setter("m0", v)))
                    out.append(set_off(8192 * x))
                elif self.seq[self.pos - 2][0] != ten:
                    raise AssertionError
                out.append(dma(ten, 1024 * h))
        return out

    def ahead(self, name):
        n = self.end[name] + OPT["ahead"]
        n -= n & 1
        return self.upto(n)


def V(text, rd=(), wr=(), **meta): return valu(text, rd, wr, **meta)
def S(text, rd=(), wr=(), **meta): return salu(text, rd, wr, **meta)


def build_start():
    sm = Stream()
    p = []
    a = p.append
    a(S("s_cmp_ge_u32 s2, 0x100", ["s2"], ["scc"]))
    a(raw("s_cbranch_scc1 L_end", kind="branch", rd=["scc"]))
    a(raw("s_load_dwordx8 s[24:31], s[0:1], 0"))
    if OPT["stamp"]:
        a(raw("s_load_dwordx2 s[60:61], s[0:1], 40"))
        a(raw("s_memrealtime s[64:65]" if OPT["stamp"] == 2 else "s_memtime s[64:65]"))
    if OPT["stamp"] or OPT["spin"]:
        a(raw("s_memrealtime s[56:57]"))
    a(V("v_lshrrev_b32 v1, 6, v0", ["v0"], ["v1"]))
    a(V("v_and_b32 v2, 63, v0", ["v0"], ["v2"]))
    a(V(f"v_readfirstlane_b32 s{sW}, v1", ["v1"], [f"s{sW}"], readlane=True))
    a(V("v_bfe_u32 v3, v2, 2, 2", ["v2"], ["v3"]))
    a(V("v_lshrrev_b32 v4, 4, v2", ["v2"], ["v4"]))
    a(V("v_and_b32 v5, 3, v2", ["v2"], ["v5"]))
    a(V("v_lshlrev_b32 v6, 8, v3", ["v3"], ["v6"]))
    a(V("v_lshl_add_u32 v6, v4, 6, v6", ["v4", "v6"], ["v6"]))
    a(V("v_lshl_add_u32 v7, v1, 11, v6", ["v1", "v6"], ["v7"]))
    a(V("v_and_b32 v8, 2, v1", ["v1"], ["v8"]))
    a(V("v_xor_b32 v8, v8, v5", ["v8", "v5"], ["v8"]))
    a(V(f"v_lshl_add_u32 v{vDK}, v8, 4, v7", ["v8", "v7"], [f"v{vDK}"]))
    a(V("v_mul_u32_u24 v9, 0x6000, v1", ["v1"], ["v9"]))
    a(V("v_add_u32 v6, v6, v9", ["v6", "v9"], ["v6"]))
    a(V(f"v_lshl_add_u32 v{vQD}, v5, 4, v6", ["v5", "v6"], [f"v{vQD}"], sim=setter("qd", 0)))
    a(V("v_lshlrev_b32 v8, 1, v1", ["v1"], ["v8"]))
    a(V("v_and_b32 v8, 2, v8", ["v8"], ["v8"]))
    a(V("v_xor_b32 v8, v8, v5", ["v8", "v5"], ["v8"]))
    a(V(f"v_lshl_add_u32 v{vDV}, v8, 4, v7", ["v8", "v7"], [f"v{vDV}"]))
    if OPT["rot"] == 1:
        a(S(f"s_lshr_b32 s{sRot}, s2, 3", ["s2"], [f"s{sRot}", "scc"]))
        a(S(f"s_and_b32 s{sRot}, s{sRot}, 15", [f"s{sRot}"], [f"s{sRot}", "scc"]))
        a(S(f"s_lshl_b32 s{sRot}, s{sRot}, 13", [f"s{sRot}"], [f"s{sRot}", "scc"]))
    if OPT["rot"] == 2:
        a(S(f"s_and_b32 s{sRot}, s2, 15", ["s2"], [f"s{sRot}", "scc"]))
        a(S(f"s_lshl_b32 s{sRot}, s{sRot}, 13", [f"s{sRot}"], [f"s{sRot}", "scc"]))
    if OPT["rot"] == 3:
        a(S(f"s_lshr_b32 s{sRot}, s2, 4", ["s2"], [f"s{sRot}", "scc"]))
        a(S(f"s_xor_b32 s{sRot}, s{sRot}, s2", [f"s{sRot}", "s2"], [f"s{sRot}", "scc"]))
        a(S(f"s_and_b32 s{sRot}, s{sRot}, 15", [f"s{sRot}"], [f"s{sRot}", "scc"]))
        a(S(f"s_lshl_b32 s{sRot}, s{sRot}, 13", [f"s{sRot}"], [f"s{sRot}", "scc"]))
    a(S("s_lshl_b32 s4, s2, 18", ["s2"], ["s4", "scc"]))
    a(S("s_mul_i32 s5, s2, 0x30000", ["s2"], ["s5"]))
    a(S(f"s_lshl_b32 s6, s{sW}, 11", [f"s{sW}"], ["s6", "scc"]))
    a(S(f"s_mul_i32 s7, s{sW}, 0x6000", [f"s{sW}"], ["s7"]))
    a(S(f"s_add_u32 s7, s7, 0x{STAGE:x}", ["s7"], ["s7", "scc"]))
    a(S(f"s_mov_b32 s{sQm}, s7", ["s7"], [f"s{sQm}"], sim=setter("qm", STAGE)))
    a(S(f"s_mov_b32 s{sQo}, 0", [], [f"s{sQo}"], sim=setter(f"s{sQo}", 0)))
    for srd, size in ((SRD_K, 0x40000), (SRD_V, 0x40000), (SRD_Q, 0x30000), (SRD_O, 0x30000)):
        a(S(f"s_mov_b32 s{srd + 2}, 0x{size:x}", [], [f"s{srd + 2}"]))
        a(S(f"s_mov_b32 s{srd + 3}, 0x20000", [], [f"s{srd + 3}"]))
    a(raw("s_waitcnt lgkmcnt(0)"))
    for srd, ptr, base in ((SRD_K, 26, 4), (SRD_Q, 24, 5), (SRD_V, 28, 4), (SRD_O, 30, 5)):
        a(S(f"s_add_u32 s{srd}, s{ptr}, s{base}", [], [f"s{srd}", "scc"]))
        a(S(f"s_addc_u32 s{srd + 1}, s{ptr + 1}, 0", ["scc"], [f"s{srd + 1}", "scc"]))
    p += sm.upto(12)
    if OPT["pf"]:
        a(raw("s_getpc_b64 s[44:45]"))
        a(label("L_pc"))
        a(raw("s_sub_u32 s44, s44, L_pc-" + NAME + "_kernel"))
        a(raw("s_subb_u32 s45, s45, 0"))
        a(raw("s_mov_b32 s46, L_codeend-" + NAME + "_kernel"))
        a(raw("s_mov_b32 s47, 0x20000"))
        a(raw("s_lshr_b32 s43, s2, 3"))
        a(raw("s_and_b32 s43, s43, 7"))
        a(raw(f"s_lshl_b32 s43, s43, 2"))
        a(raw(f"s_add_u32 s43, s43, s{sW}"))
        a(raw("s_lshl_b32 s43, s43, 10"))
        a(V("v_lshlrev_b32 v6, 4, v2", ["v2"], ["v6"]))
        a(Ins(f"buffer_load_dwordx4 v[{vB}:{vB + 3}], v6, s[44:47], s43 offen", "vld", ["v6"], [], 10))
    a(V("v_lshlrev_b32 v6, 6, v5", ["v5"], ["v6"]))
    a(V("v_and_b32 v7, 2, v3", ["v3"], ["v7"]))
    a(V("v_xor_b32 v7, v7, v4", ["v7", "v4"], ["v7"]))
    a(V("v_lshl_add_u32 v6, v7, 4, v6", ["v7", "v6"], ["v6"]))
    a(V(f"v_lshl_add_u32 v{vKA}, v3, 11, v6", ["v3", "v6"], [f"v{vKA}"], sim=setter("ka", 0)))
    a(V("v_lshl_add_u32 v6, v3, 10, v6", ["v3", "v6"], ["v6"]))
    a(V(f"v_add_u32 v{vQR}, s7, v6", ["s7", "v6"], [f"v{vQR}"]))
    a(V("v_lshlrev_b32 v6, 11, v4", ["v4"], ["v6"]))
    a(V("v_lshl_add_u32 v6, v3, 6, v6", ["v3", "v6"], ["v6"]))
    a(V("v_and_b32 v7, 1, v4", ["v4"], ["v7"]))
    a(V("v_lshl_add_u32 v6, v7, 5, v6", ["v7", "v6"], ["v6"]))
    a(V("v_lshrrev_b32 v7, 1, v5", ["v5"], ["v7"]))
    a(V("v_lshl_add_u32 v6, v7, 4, v6", ["v7", "v6"], ["v6"]))
    a(V("v_and_b32 v7, 1, v5", ["v5"], ["v7"]))
    a(V("v_lshl_add_u32 v6, v7, 3, v6", ["v7", "v6"], ["v6"]))
    a(V(f"v_xor_b32 v{vVA[0]}, 0x{VRING:x}, v6", ["v6"], [f"v{vVA[0]}"], sim=setter("va0", VRING)))
    a(V(f"v_xor_b32 v{vVA[1]}, 0x{VRING | 32:x}, v6", ["v6"], [f"v{vVA[1]}"], sim=setter("va1", VRING)))
    a(V("v_and_b32 v6, 15, v2", ["v2"], ["v6"]))
    a(V("v_mul_u32_u24 v7, 0x110, v6", ["v6"], ["v7"]))
    a(V("v_lshl_add_u32 v7, v4, 3, v7", ["v4", "v7"], ["v7"]))
    a(V(f"v_add_u32 v{vOW}, s7, v7", ["s7", "v7"], [f"v{vOW}"]))
    a(V("v_mul_u32_u24 v7, 0x110, v4", ["v4"], ["v7"]))
    a(V("v_lshl_add_u32 v7, v6, 4, v7", ["v6", "v7"], ["v7"]))
    a(V(f"v_add_u32 v{vOR}, s7, v7", ["s7", "v7"], [f"v{vOR}"]))
    a(V(f"v_lshl_add_u32 v{vOS}, v2, 4, v9", ["v2", "v9"], [f"v{vOS}"]))
    a(V("v_cmp_eq_u32 vcc, 0, v5", ["v5"], ["vcc"]))
    a(V("v_mov_b32 v7, 0x3f803f80", [], ["v7"]))
    a(S(f"s_mov_b32 s{sC}, 0x{f2u(CSC):x}", [], [f"s{sC}"]))
    a(V("v_cndmask_b32 v7, 0, v7, vcc", ["v7", "vcc"], ["v7"]))
    for k in range(4):
        a(V(f"v_accvgpr_write_b32 a{aONE + k}, v7", ["v7"], [f"a{aONE + k}"]))
    a(S(f"s_mov_b32 s{sNegC}, 0x{f2u(-CSC):x}", [], [f"s{sNegC}"]))
    a(S(f"s_mov_b32 s{sCnt}, 1", [], [f"s{sCnt}"]))
    if OPT["stamp"] == 2:
        a(raw("s_mov_b32 s86, 0"))
        a(raw("v_mov_b32 v250, 0"))
    a(S(f"s_mov_b32 s{sPh}, 0", [], [f"s{sPh}"]))
    a(S(f"s_mov_b32 s{sOo}, 0", [], [f"s{sOo}"]))
    for f in sFail:
        a(S(f"s_mov_b64 s[{f}:{f + 1}], 0", [], [f"s{f}", f"s{f + 1}"]))
    p += sm.ahead("K0")
    a(wait(v=True, pre=True))
    a(bar())
    p += [k_read(0, n) for n in range(8)]
    p += sm.ahead("Q0")
    a(wait(v=True))
    p += [q_read(0, 0, ks) for ks in range(4)]
    a(wait(l=True))
    segs["pro"] = p

    X1 = BL + 23
    mf = [mf_at(X) for X in range(X1)]
    pos0 = sm.pos

    def mk():
        sm.pos = pos0
        ops = []
        for t in range(6):
            ops += sm_flex(t, PL * t + 7, first=True)
        ops += sm_flex(0, BL + 7, dl=X1 - 2)
        def q_event(t, g):
            return fixed(Grp(sm.ahead(f"Q{t}") + [wait(v=True)] + [q_read(0, t, ks) for ks in range(4)]), g, "end")
        ops.append(q_event(1, 14))
        ops.append(fixed(wait(l=True), 16, "end"))
        ops.append(fixed(Grp(sm.ahead("V0") + [wait(v=True, pre=True), bar()] + [v_read(0, n) for n in range(16)]), 19, "end"))
        ops.append(fixed(wait(l=True), 24, "end"))
        for t in (2, 3, 4):
            ops.append(q_event(t, PL * t - 4))
            ops.append(fixed(wait(l=True), PL * t - 1, "end"))
        ev = fixed(Grp(sm.ahead("V1") + [wait(v=True, l=True, pre=True), bar()] + [k_read(1, n) for n in range(8)]), 72, "end")
        ops.append(ev)
        vr = chain([v_read(1, n) for n in range(16)], 73, BL + 10, pos="front", first_deps=[(ev, 1)], prio=74, step=1)
        ops += vr
        ops.append(q_event(5, PL * 5 - 4))
        ops.append(fixed(wait(l=True), PL * 5 - 1, "end"))
        rest = sm.upto(10 ** 6)
        rest += [S(f"s_mov_b32 s{sX}, s6", ["s6"], [f"s{sX}"], sim=setter("x", 0)),
                 set_off(0x8000), S(f"s_mov_b32 s{sLin}, 0x8000", [], [f"s{sLin}"]),
                 S(f"s_mov_b32 s{sQm}, s7", ["s7"], [f"s{sQm}"], sim=setter("qm", STAGE)),
                 S(f"s_mov_b32 s{sQo}, 0x18000", [], [f"s{sQo}"], sim=setter(f"s{sQo}", 0x18000))]
        ops.append(fixed(Grp(rest), 90, "end"))
        ops.append(fixed(m0_for("V"), 92, "pre"))
        ops.append(fixed(dma("V", 0), 94, "front"))
        ops.append(fixed(dma("V", 1024), 98, "front"))
        ops.append(fixed(m0_for("K"), 100, "pre"))
        ops.append(fixed(dma("K", 0), 102, "front"))
        ops.append(fixed(dma("K", 1024), 106, "front"))
        ops.append(fixed(off_add(), 108, "pre"))
        ops.append(fixed(x_step(0), 109, "pre"))
        if OPT["rot"]:
            ops.append(fixed(off_fin(), 110, "pre"))
        ops.append(Op(addr_xor(vKA, "ka"), 73, BL + 20))
        for k in range(2):
            ops.append(Op(addr_xor(vVA[k], f"va{k}"), 73, BL + 21, [(vr[-1], 0)]))
        ops.append(fixed(wait(v=True, l=True, pre=True), BL + 22, "pre"))
        return ops

    segs["first"] = sched_auto(mf, mk, "first", B=OPT["bfirst"], quiet_gaps=(X1 - 1,))


def stamp(k):
    return raw(f"s_mem{'real' if OPT['stamp'] == 2 else ''}time s[{64 + 2 * k}:{65 + 2 * k}]")


build_start()
segs["loopB"] = [label("L_loopB")] + body_loop(False) + [raw("s_cbranch_scc1 L_loopB", kind="branch", rd=["scc"], scc_from="loop")]
segs["disp"] = [S(f"s_cmp_lg_u32 s{sPh}, 0", [f"s{sPh}"], ["scc"]), raw("s_cbranch_scc1 L_tail", kind="branch", rd=["scc"])]
segs["toA"] = [S(f"s_mov_b32 s{sCnt}, 6", [], [f"s{sCnt}"])]
segs["loopA"] = [label("L_loopA")] + body_loop(True) + [raw("s_cbranch_scc1 L_loopA", kind="branch", rd=["scc"], scc_from="loop")]
build_trans()
build_tail()

if OPT["stamp"]:
    ib = next(i for i, x in enumerate(segs["pro"]) if x.kind == "bar")
    segs["pro"].insert(ib + 1, stamp(1))
    segs["pro"].append(stamp(2))
    segs["first"].append(stamp(3))
    segs["toA"].insert(0, stamp(4))
    segs["trans"].insert(1, stamp(5))
    segs["trans"].insert(-1, stamp(6))
    segs["tail"].insert(1, stamp(7))
    segs["tail"].append(stamp(8))

trace = ["pro", "first", "loopB", "disp", "toA"] + ["loopA"] * 6 + ["trans"] + ["loopB"] * 7 + ["disp", "tail"]
nfix = check_hazards(trace, segs, fix_ok={"pro", "first", "trans", "tail"})
check_scc(trace, segs)
mx = derive_waits(trace, segs, {})
print(f"; exposed nops {nfix}, max vmem outstanding {mx}", file=sys.stderr)
for s in ("pro", "first", "loopB", "loopA", "trans", "tail"):
    print(s, [i.render().strip()[10:] for i in segs[s] if i.kind == "wait"], file=sys.stderr)

ref = open(f"cdna_kernels/{NAME}.s.ref").read()
out = [l for l in ref.splitlines() if l.startswith(";") and "@launch" not in l and "Override" not in l and "grid=ceil" not in l]
out.append("; @launch grid=(256,1,1) block=(256,1,1) lds=163840")
out.append('.amdgcn_target "amdgcn-amd-amdhsa--gfx950"')
out.append(".text")
out.append(f".globl {NAME}_kernel")
out.append(".p2align 8")
out.append(f".type {NAME}_kernel,@function")
out.append(f"{NAME}_kernel:")


def emit(s):
    out.append(f"; ---- {s}")
    for i in segs[s]:
        out.append(i.render())


for s in ("pro", "first", "loopB", "disp", "toA", "loopA", "trans", "tail"):
    if OPT["align"] and s in ("loopB", "loopA"):
        out.append(".p2align 6" if OPT["align"] == 1 else ".p2align 3")
    emit(s)
if OPT["stamp"]:
    out += """    s_waitcnt vmcnt(0)
    s_memXtime s[82:83]
    s_memrealtime s[58:59]
    s_waitcnt lgkmcnt(0)
    s_mov_b32 s62, 0x10000
    s_mov_b32 s63, 0x20000
    s_lshl_b32 s4, s2, 2
    s_add_u32 s4, s4, s3
    s_lshl_b32 s4, s4, 6
    v_mov_b32 v1, s4""".replace("memX", "memreal" if OPT["stamp"] == 2 else "mem").split("\n")
    for k in range(10):
        out.append(f"    v_mov_b32 v{4 + k}, s{64 + 2 * k}")
    out += """    v_mov_b32 v14, s56
    v_mov_b32 v15, s58
    s_getreg_b32 s5, hwreg(HW_REG_XCC_ID)
    v_mov_b32 v16, s5
    s_getreg_b32 s5, hwreg(HW_REG_HW_ID)
    v_mov_b32 v17, s5
    s_nop 1
    buffer_store_dwordx2 v[16:17], v1, s[60:63], 0 offen offset:48
    buffer_store_dwordx4 v[4:7], v1, s[60:63], 0 offen
    buffer_store_dwordx4 v[8:11], v1, s[60:63], 0 offen offset:16
    buffer_store_dwordx4 v[12:15], v1, s[60:63], 0 offen offset:32
    s_mov_b32 s62, 0x60000
    s_lshl_b32 s4, s4, 2
    s_add_u32 s4, s4, 0x10000
    v_mbcnt_lo_u32_b32 v1, -1, 0
    v_mbcnt_hi_u32_b32 v1, -1, v1
    v_lshlrev_b32 v1, 2, v1
    s_nop 1
    buffer_store_dword v250, v1, s[60:63], s4 offen""".split("\n")
if OPT["spin"]:
    out += f"""    s_waitcnt vmcnt(0)
L_spin:
    s_memrealtime s[58:59]
    s_waitcnt lgkmcnt(0)
    s_sub_u32 s58, s58, s56
    s_cmp_lt_u32 s58, {OPT['spin']}
    s_cbranch_scc1 L_spin""".split("\n")
if OPT["slow"]:
    import slowpath
    out += slowpath.emit(globals())
out.append("L_end:")
out.append("    s_endpgm")
out.append("L_codeend:")
out.append(f""".section .rodata,"a"
.p2align 6
.amdhsa_kernel {NAME}_kernel
  .amdhsa_next_free_vgpr 512
  .amdhsa_next_free_sgpr 96
  .amdhsa_accum_offset 256
  .amdhsa_group_segment_fixed_size 0
  .amdhsa_kernarg_size 48
  .amdhsa_user_sgpr_count 2
  .amdhsa_user_sgpr_kernarg_segment_ptr 1
  .amdhsa_system_sgpr_workgroup_id_x 1
  .amdhsa_float_denorm_mode_32 3
.end_amdhsa_kernel""")
open(sys.argv[1], "w").write("\n".join(out) + "\n")
```

```python
from asmlib import *


def emit(G):
    SRD_K, SRD_V, SRD_Q, SRD_O = G["SRD_K"], G["SRD_V"], G["SRD_Q"], G["SRD_O"]
    sC, sNegC, sFail, sW, aONE = G["sC"], G["sNegC"], G["sFail"], G["sW"], G["aONE"]
    vOW, vOR, vOS, vB = G["vOW"], G["vOR"], G["vOS"], G["vB"]
    sHd, sT, sJ, sQoff, sKoff, sK0, sM0 = 70, 71, 72, 73, 74, 75, 76
    vL, vQ, vK, vD0, vD1, vA0, vA1, vMx, vTm = 1, 2, 3, 4, 5, 6, 7, 8, 9
    O, Sx = 64, 96
    aQ, aK, aV, aL = 0, 96, 160, 224
    V, S = G["V"], G["S"]
    W = lambda t: raw("s_waitcnt " + t)
    segs = {}

    def srd(n): return rng("s", n, 4)

    def kloads():
        return [Ins(f"buffer_load_dwordx4 {rng('a', aK + 4 * n, 4)}, v{vK}, {srd(SRD_K)}, s{sKoff} offen offset:{1024 * (n >> 2) + 64 * (n & 3)}",
                    "vld", [f"v{vK}", f"s{sKoff}"], R("a", aK + 4 * n, 4)) for n in range(8)]

    def qk():
        return [mfma16("v", Sx + 4 * (n >> 2), "a", aK + 4 * n, "a", aQ + 4 * (n & 3), czero=(n & 3) == 0) for n in range(8)]

    p = []
    a = p.append
    a(S(f"s_or_b64 s[78:79], s[{sFail[0]}:{sFail[0] + 1}], s[{sFail[1]}:{sFail[1] + 1}]", [], ["scc"]))
    a(raw("s_cbranch_scc0 L_end", kind="branch", rd=["scc"]))
    a(W("vmcnt(0) lgkmcnt(0)"))
    a(V(f"v_mbcnt_lo_u32_b32 v{vL}, -1, 0", [], [f"v{vL}"]))
    a(V(f"v_mbcnt_hi_u32_b32 v{vL}, -1, v{vL}", [f"v{vL}"], [f"v{vL}"]))
    a(V(f"v_lshrrev_b32 v10, 4, v{vL}", [f"v{vL}"], ["v10"]))
    a(V(f"v_and_b32 v11, 3, v{vL}", [f"v{vL}"], ["v11"]))
    a(V(f"v_bfe_u32 v12, v{vL}, 2, 2", [f"v{vL}"], ["v12"]))
    a(V(f"v_and_b32 v13, 15, v{vL}", [f"v{vL}"], ["v13"]))
    a(S(f"s_mul_i32 s77, s{sW}, 0x6000", [f"s{sW}"], ["s77"]))
    a(V("v_lshlrev_b32 v14, 4, v10", ["v10"], ["v14"]))
    a(V("v_lshl_add_u32 v15, v13, 8, v14", ["v13", "v14"], ["v15"]))
    a(V(f"v_add_u32 v{vQ}, s77, v15", ["v15", "s77"], [f"v{vQ}"]))
    a(V("v_lshl_add_u32 v15, v12, 3, v11", ["v12", "v11"], ["v15"]))
    a(V(f"v_lshl_add_u32 v{vK}, v15, 8, v14", ["v15", "v14"], [f"v{vK}"]))
    a(V("v_lshlrev_b32 v15, 8, v12", ["v12"], ["v15"]))
    a(V("v_lshl_add_u32 v15, v10, 6, v15", ["v10", "v15"], ["v15"]))
    a(V(f"v_lshl_add_u32 v{vD0}, v11, 4, v15", ["v11", "v15"], [f"v{vD0}"]))
    a(V(f"v_xor_b32 v{vD1}, 32, v{vD0}", [f"v{vD0}"], [f"v{vD1}"]))
    a(S(f"s_add_u32 s{sM0}, s77, 0x{G['STAGE'] + 8192:x}", ["s77"], [f"s{sM0}", "scc"]))
    a(V("v_lshlrev_b32 v15, 11, v10", ["v10"], ["v15"]))
    a(V("v_lshl_add_u32 v15, v12, 6, v15", ["v12", "v15"], ["v15"]))
    a(V("v_and_b32 v16, 1, v10", ["v10"], ["v16"]))
    a(V("v_lshl_add_u32 v15, v16, 5, v15", ["v16", "v15"], ["v15"]))
    a(V("v_lshrrev_b32 v16, 1, v11", ["v11"], ["v16"]))
    a(V("v_lshl_add_u32 v15, v16, 4, v15", ["v16", "v15"], ["v15"]))
    a(V("v_and_b32 v16, 1, v11", ["v11"], ["v16"]))
    a(V("v_lshl_add_u32 v15, v16, 3, v15", ["v16", "v15"], ["v15"]))
    a(V("v_xor_b32 v16, 32, v15", ["v15"], ["v16"]))
    a(V(f"v_add_u32 v{vA0}, s{sM0}, v15", ["v15", f"s{sM0}"], [f"v{vA0}"]))
    a(V(f"v_add_u32 v{vA1}, s{sM0}, v16", ["v16", f"s{sM0}"], [f"v{vA1}"]))
    a(S(f"s_mov_b32 s{sHd}, 0", [], [f"s{sHd}"]))
    segs["s0"] = p

    p = []
    a = p.append
    a(label("L_sl_head"))
    a(S(f"s_cmp_eq_u32 s{sHd}, 0", [f"s{sHd}"], ["scc"]))
    a(S(f"s_cselect_b64 s[78:79], s[{sFail[0]}:{sFail[0] + 1}], s[{sFail[1]}:{sFail[1] + 1}]", ["scc"], ["s78", "s79"]))
    a(S("s_cmp_eq_u64 s[78:79], 0", ["s78", "s79"], ["scc"]))
    a(raw("s_cbranch_scc1 L_sl_next", kind="branch", rd=["scc"]))
    a(S(f"s_mul_i32 s{sQoff}, s{sHd}, 0x18000", [f"s{sHd}"], [f"s{sQoff}"]))
    a(S(f"s_lshl_b32 s{sK0}, s{sHd}, 17", [f"s{sHd}"], [f"s{sK0}", "scc"]))
    a(S(f"s_mov_b32 s{sT}, 0", [], [f"s{sT}"]))
    segs["s1"] = p

    p = []
    a = p.append
    a(label("L_sl_tile"))
    for ks in range(4):
        a(Ins(f"buffer_load_dwordx4 {rng('a', aQ + 4 * ks, 4)}, v{vQ}, {srd(SRD_Q)}, s{sQoff} offen offset:{64 * ks}", "vld",
              [f"v{vQ}", f"s{sQoff}"], R("a", aQ + 4 * ks, 4)))
    a(V(f"v_mov_b32 v{vMx}, 0xff800000", [], [f"v{vMx}"]))
    a(S(f"s_mov_b32 s{sKoff}, s{sK0}", [], [f"s{sKoff}"]))
    a(S(f"s_mov_b32 s{sJ}, 16", [], [f"s{sJ}"]))
    segs["s2"] = p

    p = [label("L_sl_p1")] + kloads() + [W("vmcnt(0)")] + qk()
    a = p.append
    for k in range(4):
        a(V(f"v_max3_f32 v{vMx}, v{vMx}, v{Sx + 2 * k}, v{Sx + 2 * k + 1}", [f"v{vMx}"] + R("v", Sx + 2 * k, 2), [f"v{vMx}"]))
    a(S(f"s_add_u32 s{sKoff}, s{sKoff}, 0x2000", [], [f"s{sKoff}", "scc"]))
    a(S(f"s_sub_u32 s{sJ}, s{sJ}, 1", [], [f"s{sJ}", "scc"]))
    a(S(f"s_cmp_lg_u32 s{sJ}, 0", [], ["scc"]))
    a(raw("s_cbranch_scc1 L_sl_p1", kind="branch", rd=["scc"]))
    segs["s3"] = p

    p = []
    a = p.append
    for pm in (perm16, perm):
        a(V(f"v_mov_b32 v{vTm}, v{vMx}", [f"v{vMx}"], [f"v{vTm}"]))
        a(pm(vTm, vMx))
        a(V(f"v_max_f32 v{vMx}, v{vMx}, v{vTm}", [f"v{vMx}", f"v{vTm}"], [f"v{vMx}"]))
    a(V(f"v_mul_f32 v{vMx}, s{sNegC}, v{vMx}", [f"v{vMx}"], [f"v{vMx}"]))
    for r in range(O, O + 32):
        a(V(f"v_mov_b32 v{r}, 0", [], [f"v{r}"]))
    for r in range(4):
        a(V(f"v_accvgpr_write_b32 a{aL + r}, 0", [], [f"a{aL + r}"]))
    a(S(f"s_mov_b32 s{sKoff}, s{sK0}", [], [f"s{sKoff}"]))
    a(S(f"s_mov_b32 s{sJ}, 16", [], [f"s{sJ}"]))
    segs["s4"] = p

    p = [label("L_sl_p2")] + kloads()
    a = p.append
    for n in range(8):
        if n in (0, 4):
            a(S(f"s_add_u32 m0, s{sM0}, 0x{1024 * n:x}", [], ["m0", "scc"]))
            a(S(f"s_add_u32 s80, s{sKoff}, 0x{1024 * n:x}", [], ["s80", "scc"]))
        vo = vD1 if (n >> 1) & 1 else vD0
        a(Ins(f"buffer_load_dwordx4 v{vo}, {srd(SRD_V)}, s80 offen offset:{1024 * (n & 3)} lds", "dma", [f"v{vo}", "m0", "s80"], []))
    a(W("vmcnt(0)"))
    p += qk()
    for n in range(16):
        db, half = n >> 1, n & 1
        va = (vA0, vA1)[db & 1]
        a(Ins(f"ds_read_b64_tr_b16 {rng('a', aV + 2 * n, 2)}, v{va} offset:{1024 * half + 256 * (db >> 1)}", "ds_r", [f"v{va}"],
              R("a", aV + 2 * n, 2)))
    for e in range(8):
        a(V(f"v_fma_f32 v{Sx + e}, v{Sx + e}, s{sC}, v{vMx}", [f"v{Sx + e}", f"v{vMx}"], [f"v{Sx + e}"]))
    for e in range(8):
        a(trans(f"v_exp_f32 v{Sx + e}, v{Sx + e}", [f"v{Sx + e}"], [f"v{Sx + e}"]))
    for k in range(4):
        a(V(f"v_cvt_pk_bf16_f32 v{Sx + k}, v{Sx + 2 * k}, v{Sx + 2 * k + 1}", R("v", Sx + 2 * k, 2), [f"v{Sx + k}"]))
    a(W("lgkmcnt(0)"))
    for db in range(8):
        a(mfma16("v", O + 4 * db, "a", aV + 4 * db, "v", Sx))
    a(mfma16("a", aL, "a", aONE, "v", Sx))
    a(S(f"s_add_u32 s{sKoff}, s{sKoff}, 0x2000", [], [f"s{sKoff}", "scc"]))
    a(S(f"s_sub_u32 s{sJ}, s{sJ}, 1", [], [f"s{sJ}", "scc"]))
    a(S(f"s_cmp_lg_u32 s{sJ}, 0", [], ["scc"]))
    a(raw("s_cbranch_scc1 L_sl_p2", kind="branch", rd=["scc"]))
    segs["s5"] = p

    p = []
    a = p.append
    a(V(f"v_accvgpr_read_b32 v{vTm}, a{aL}", [f"a{aL}"], [f"v{vTm}"]))
    a(trans(f"v_rcp_f32 v{vTm}, v{vTm}", [f"v{vTm}"], [f"v{vTm}"]))
    for r in range(O, O + 32):
        a(V(f"v_mul_f32 v{r}, v{vTm}, v{r}", [f"v{r}", f"v{vTm}"], [f"v{r}"]))
    for db in range(8):
        b = O + 4 * db
        a(V(f"v_cvt_pk_bf16_f32 v{b}, v{b}, v{b + 1}", R("v", b, 2), [f"v{b}"]))
        a(V(f"v_cvt_pk_bf16_f32 v{b + 1}, v{b + 2}, v{b + 3}", R("v", b + 2, 2), [f"v{b + 1}"]))
    p += G["slow_out"](O, sQoff)
    a(W("vmcnt(0)"))
    a(S(f"s_add_u32 s{sQoff}, s{sQoff}, 0x1000", [], [f"s{sQoff}", "scc"]))
    a(S(f"s_add_u32 s{sT}, s{sT}, 1", [], [f"s{sT}", "scc"]))
    a(S(f"s_cmp_lg_u32 s{sT}, 6", [], ["scc"]))
    a(raw("s_cbranch_scc1 L_sl_tile", kind="branch", rd=["scc"]))
    segs["s6"] = p
    segs["s7"] = [label("L_sl_next"), S(f"s_add_u32 s{sHd}, s{sHd}, 1", [], [f"s{sHd}", "scc"]),
                  S(f"s_cmp_lg_u32 s{sHd}, 2", [], ["scc"]), raw("s_cbranch_scc1 L_sl_head", kind="branch", rd=["scc"])]
    tile = ["s2", "s3", "s3", "s4", "s5", "s5", "s6"]
    trace = ["s0", "s1"] + tile + tile + ["s7", "s1", "s7"]
    check_hazards(trace, segs, fix_ok=set(segs))
    out = ["; ---- exact fallback (true row maximum)"]
    for s in sorted(segs):
        out += [i.render() for i in segs[s]]
    return out
```

```python
import math
import struct
import sys
from asmlib import *

NAME = "standalone__gqa_softmax__near_ridge"
OPT = dict(nt=1, stamp=0, slow=1, align=1, thr=0x4E800000, stpol=1, ahead=10, spin=0, rot=0, tlb=0, pf=0, btail=0, btrans=0, bfirst=0)
for a in sys.argv[2:]:
    k, v = a.split("=")
    OPT[k] = int(v, 0)


def f2u(x):
    return struct.unpack("<I", struct.pack("<f", x))[0]


CSC = math.log2(math.e) / math.sqrt(128.0)
NT = " nt" if OPT["nt"] else ""
STPOL = ["", " nt", " sc1", " sc0 sc1", " nt sc1"][OPT["stpol"]]

def vO(t, db): return 32 * t + 4 * db
SB = [192, 200]
vM = list(range(208, 214))
vKA = 214
vVA = [215, 216]
vQR, vDK, vDV, vQD, vOS, vOW, vOR = 217, 218, 219, 220, 221, 222, 223
vB = 224
vRI = [240, 241]
vT = [242, 243, 244]
def aQ(t, ks): return 16 * t + 4 * ks
def aK(buf, kb, ks): return 96 + 32 * buf + 16 * kb + 4 * ks
def aV(buf, db): return 160 + 32 * buf + 4 * db
def aL(t): return 224 + 4 * t
aONE = 248

sW = 3
SRD_K, SRD_V, SRD_Q, SRD_O = 8, 12, 16, 20
sC, sNegC, sOff, sX, sQm, sQo, sCnt, sPh, sOo = 32, 33, 34, 35, 36, 37, 38, 39, 40
sFail = [50, 52]
sLin, sRot = 41, 42
KRING, VRING, STAGE = 0, 0x8000, 0x10000
BL, PL = 102, 17


def setter(k, v):
    def f(st): st[k] = v
    return f


def mf_at(X):
    blk, g = divmod(X, BL)
    p, u = divmod(g, PL)
    if u < 8:
        if blk > 31:
            return None
        return mfma16("v", SB[p & 1] + 4 * (u >> 2), "a", aK(blk & 1, u >> 2, u & 3), "a", aQ(p, u & 3), czero=(u & 3) == 0)
    pb, pt = (blk, p - 1) if p else (blk - 1, 5)
    if pb < 0 or pb > 31:
        return None
    z = pb % 16 == 0
    if u < 16:
        return mfma16("v", vO(pt, u - 8), "a", aV(pb & 1, u - 8), "v", SB[pt & 1], czero=z)
    return mfma16("a", aL(pt), "a", aONE, "v", SB[pt & 1], czero=z)


def k_read(x, n):
    kb, ks = n >> 2, n & 3
    imm = 8192 * (x & 1) + 1024 * kb + 256 * ks
    d = aK(x & 1, kb, ks)
    return Ins(f"ds_read_b128 {rng('a', d, 4)}, v{vKA} offset:{imm}", "ds_r", [f"v{vKA}"], R("a", d, 4), 4,
               ten="K", areg="ka", imm=imm)


def v_read(x, n):
    db, half = n >> 1, n & 1
    imm = 8192 * (x & 1) + 1024 * half + 256 * (db >> 1)
    d = aV(x & 1, db) + 2 * half
    return Ins(f"ds_read_b64_tr_b16 {rng('a', d, 2)}, v{vVA[db & 1]} offset:{imm}", "ds_r", [f"v{vVA[db & 1]}"], R("a", d, 2), 4,
               ten="V", areg=f"va{db & 1}", imm=imm)


def q_read(head, t, ks):
    imm = 4096 * t + 256 * ks
    return Ins(f"ds_read_b128 {rng('a', aQ(t, ks), 4)}, v{vQR} offset:{imm}", "ds_r", [f"v{vQR}"], R("a", aQ(t, ks), 4), 4,
               ten="Q", qoff=head * 0x18000 + 4096 * t)


def dma(ten, imm):
    srd, vo, so = dict(K=(SRD_K, vDK, sOff), V=(SRD_V, vDV, sOff), Q=(SRD_Q, vQD, sQo))[ten]
    o = f" offset:{imm}" if imm else ""
    return Ins(f"buffer_load_dwordx4 v{vo}, {rng('s', srd, 4)}, s{so} offen{o}{NT} lds", "dma",
               [f"v{vo}", f"s{so}", "m0"] + R("s", srd, 4), [], 16, ten=ten, imm=imm, soff=f"s{so}")


def m0_for(ten):
    if ten == "K":
        return salu(f"s_mov_b32 m0, s{sX}", [f"s{sX}"], ["m0"], sim=lambda st: st.__setitem__("m0", st["x"]))
    if ten == "V":
        return salu(f"s_xor_b32 m0, s{sX}, 0x8000", [f"s{sX}"], ["m0", "scc"], sim=lambda st: st.__setitem__("m0", st["x"] ^ 0x8000))
    return salu(f"s_mov_b32 m0, s{sQm}", [f"s{sQm}"], ["m0"], sim=lambda st: st.__setitem__("m0", st["qm"]))


def x_step(blk):
    c = 0x6000 if blk & 1 else 0x2000
    return salu(f"s_xor_b32 s{sX}, s{sX}, 0x{c:x}", [f"s{sX}"], [f"s{sX}", "scc"], sim=lambda st: st.__setitem__("x", st["x"] ^ c))


def s_addc(reg, key, c):
    return salu(f"s_add_u32 s{reg}, s{reg}, 0x{c:x}", [f"s{reg}"], [f"s{reg}", "scc"], sim=lambda st: st.__setitem__(key, st[key] + c))


def off_add():
    if OPT["rot"]:
        return salu(f"s_add_u32 s{sLin}, s{sLin}, 0x2000", [f"s{sLin}"], [f"s{sLin}", "scc"])
    return s_addc(sOff, f"s{sOff}", 8192)


def off_fin():
    if not OPT["rot"]:
        return None
    return salu(f"s_xor_b32 s{sOff}, s{sLin}, s{sRot}", [f"s{sLin}", f"s{sRot}"], [f"s{sOff}", "scc"],
                sim=lambda st: st.__setitem__(f"s{sOff}", st[f"s{sOff}"] + 8192))
def qm_add(): return s_addc(sQm, "qm", 2048)
def qo_add(): return s_addc(sQo, f"s{sQo}", 2048)


def addr_xor(reg, key):
    return valu(f"v_xor_b32 v{reg}, 0x4000, v{reg}", [f"v{reg}"], [f"v{reg}"], sim=lambda st: st.__setitem__(key, st[key] ^ 0x4000))


def qd_xor():
    return valu(f"v_xor_b32 v{vQD}, 32, v{vQD}", [f"v{vQD}"], [f"v{vQD}"], sim=lambda st: st.__setitem__("qd", st["qd"] ^ 2))


def i_fma(t, e):
    r = f"v{SB[t & 1] + e}"
    return valu(f"v_fma_f32 {r}, {r}, s{sC}, v{vM[t]}", [r, f"s{sC}", f"v{vM[t]}"], [r])


def i_exp(t, e):
    r = f"v{SB[t & 1] + e}"
    return trans(f"v_exp_f32 {r}, {r}", [r], [r])


def i_cvt(t, k):
    S = SB[t & 1]
    return valu(f"v_cvt_pk_bf16_f32 v{S + k}, v{S + 2 * k}, v{S + 2 * k + 1}", R("v", S + 2 * k, 2), [f"v{S + k}"])


T_DS6 = "d f0|e0|d f1|e1|f2 c0|e2|d f3|e3|f4 c1|e4|d f5|e5|f6 c2|e6|d f7|e7|d c3"
T_DMA = "f0 f1|e0|e1|f2 c0|e2|d f3|e3|f4 c1|e4|d f5|e5|f6 c2|e6|d f7|e7|d c3|M"
T_BAR = "d f0|e0|d f1|e1|f2 c0|e2|f3 f4|e3|e4|f5 c1|e5|f6 f7|e6|e7|c2 c3||B"
TEMPL = [T_BAR, T_DMA, T_DMA, T_DMA, T_DMA, T_DS6]


def reads_of(x):
    return [k_read(x, n) for n in range(8)] + [v_read(x, n) for n in range(16)]


def body_loop(withq):
    X0, X1 = BL + 23, 3 * BL + 23
    G = {X: dict(pre=[], front=[], mid=[], end=[]) for X in range(X0, X1)}
    for blk in (1, 2):
        rd = reads_of(blk + 1)
        dm = [dma("V", 0), dma("V", 1024), dma("K", 0), dma("K", 1024)]
        G[BL * blk + 23]["front"].append(bar())
        for tt in range(1, 7):
            t = tt % 6
            s = BL * blk + PL * tt + 7
            for u, cell in enumerate(TEMPL[t].split("|")):
                for w in cell.split():
                    X = s + u
                    if w == "d":
                        G[X]["front"].append(rd.pop(0))
                    elif w == "M":
                        G[X]["front"].append(dm.pop(0))
                    elif w == "B":
                        pass
                    else:
                        G[X]["mid"].append(dict(f=i_fma, e=i_exp, c=i_cvt)[w[0]](t, int(w[1])))
        assert not rd and not dm
        b = BL * blk
        G[b + 38]["pre"].append(m0_for("V"))
        G[b + 72]["pre"].append(wait(l=True))
        G[b + 73]["pre"].append(m0_for("K"))
        G[b + 93]["pre"].append(off_add())
        if OPT["rot"]:
            G[b + 96]["pre"].append(off_fin())
        G[b + 95]["pre"].append(x_step(blk))
        G[b + BL + 22]["pre"].append(wait(v=True, l=True, pre=True))
        if OPT["stamp"] == 2:
            G[b + 25]["pre"].append(raw("s_memrealtime s[84:85]"))
            G[b + 75]["pre"].append(raw("s_waitcnt lgkmcnt(0)"))
            G[b + 92]["pre"].append(raw("s_mov_b32 m0, s86"))
            G[b + 93]["mid"].append(raw("v_writelane_b32 v250, s84, m0"))
            G[b + 98]["pre"].append(raw("s_add_u32 s86, s86, 1"))
        if withq:
            G[b + 94]["pre"].append(m0_for("Q"))
            G[b + 97]["front"].append(dma("Q", 0))
            G[b + 99]["front"].append(dma("Q", 1024))
            G[b + 101]["pre"].append(qm_add())
            G[b + 103]["pre"].append(qo_add())
            G[b + 101]["mid"].append(qd_xor())
    G[2 * BL + 60]["mid"].append(addr_xor(vKA, "ka"))
    G[3 * BL + 11]["mid"].append(addr_xor(vVA[0], "va0"))
    G[3 * BL + 13]["mid"].append(addr_xor(vVA[1], "va1"))
    G[3 * BL + 19]["pre"].append(salu(f"s_sub_u32 s{sCnt}, s{sCnt}, 1", [f"s{sCnt}"], [f"s{sCnt}", "scc"]))
    G[3 * BL + 20]["pre"].append(salu(f"s_cmp_lg_u32 s{sCnt}, 0", [f"s{sCnt}"], ["scc"], scc_id="loop"))
    out = []
    est = 0
    for X in range(X0, X1):
        out.append(mf_at(X))
        c = 8
        for p in ("pre", "front", "mid", "end"):
            out += G[X][p]
            c += sum(i.cost for i in G[X][p][(1 if p == "pre" else 0):])
        est += max(16, c)
    print(f"; loop withq={withq} est {est}", file=sys.stderr)
    return out


def fixed(ins, g, pos="mid", deps=()):
    return Op(ins, g, g, deps, pos=pos)


def chain(items, rel, dl, pos="mid", first_deps=(), prio=None, step=0, mg=0):
    ops = []
    for k, ins in enumerate(items):
        deps = [(ops[-1], mg)] if ops else list(first_deps)
        ops.append(Op(ins, rel, dl, deps, pos=pos, prio=None if prio is None else prio + step * k))
    return ops


def sm_flex(t, s, first=False, dl=None, prio_shift=0):
    ops = []
    dl = s + 16 if dl is None else dl
    start = []
    if first:
        S, M, T = SB[t & 1], vM[t], vT[0]
        it = [valu(f"v_max3_f32 v{M}, v{S}, v{S + 1}, v{S + 2}", R("v", S, 3), [f"v{M}"]),
              valu(f"v_max3_f32 v{M}, v{M}, v{S + 3}, v{S + 4}", [f"v{M}"] + R("v", S + 3, 2), [f"v{M}"]),
              valu(f"v_max3_f32 v{M}, v{M}, v{S + 5}, v{S + 6}", [f"v{M}"] + R("v", S + 5, 2), [f"v{M}"]),
              valu(f"v_max_f32 v{M}, v{M}, v{S + 7}", [f"v{M}", f"v{S + 7}"], [f"v{M}"]),
              valu(f"v_mov_b32 v{T}, v{M}", [f"v{M}"], [f"v{T}"])]
        a = chain(it, s + 3, dl, prio=s + prio_shift)
        b = chain([perm16(T, M), valu(f"v_max_f32 v{M}, v{M}, v{T}", [f"v{M}", f"v{T}"], [f"v{M}"]),
                   valu(f"v_mov_b32 v{T}, v{M}", [f"v{M}"], [f"v{T}"])], s + 3, dl, first_deps=[(a[-1], 1)], prio=s + prio_shift)
        c = chain([perm(T, M), valu(f"v_max_f32 v{M}, v{M}, v{T}", [f"v{M}", f"v{T}"], [f"v{M}"]),
                   valu(f"v_mul_f32 v{M}, s{sNegC}, v{M}", [f"v{M}", f"s{sNegC}"], [f"v{M}"])], s + 3, dl,
                  first_deps=[(b[-1], 1)], prio=s + prio_shift)
        ops += a + b + c
        start = [(c[-1], 0)]
    F, E, C = [], [], []
    for e in range(8):
        f = Op(i_fma(t, e), max(0, s if e < 4 else s + 3), dl, start + ([(F[-1], 0)] if F else []), prio=s + 2 * e + prio_shift)
        F.append(f)
        x = Op(i_exp(t, e), max(0, s), dl, [(f, 0)] + ([(E[-1], 0)] if E else []), prio=s + 2 * e + 1 + prio_shift)
        E.append(x)
        ops += [f, x]
        if e & 1:
            c = Op(i_cvt(t, e >> 1), max(0, s), dl, [(x, 1)] + ([(C[-1], 0)] if C else []), prio=s + 2 * e + 2 + prio_shift)
            C.append(c)
            ops.append(c)
    return ops


def o_store(n):
    o = f" offset:{n * 1024}" if n else ""
    return Ins(f"buffer_store_dwordx4 {rng('v', vB + 4 * n, 4)}, v{vOS}, {rng('s', SRD_O, 4)}, s{sOo} offen{o}{STPOL}", "vst",
               [f"v{vOS}", f"s{sOo}"] + R("s", SRD_O, 4) + R("v", vB + 4 * n, 4), [], 20, data=R("v", vB + 4 * n, 4))


def slow_out(O, soff):
    p = []
    for m in range(4):
        b0, b1 = O + 8 * m, O + 8 * m + 4
        p.append(Ins(f"ds_write2_b64 v{vOW}, v[{b0}:{b0 + 1}], v[{b1}:{b1 + 1}] offset0:{8 * m} offset1:{8 * m + 4}", "ds_w",
                     [f"v{vOW}"] + R("v", b0, 2) + R("v", b1, 2), []))
    for n in range(4):
        p.append(Ins(f"ds_read_b128 {rng('v', vB + 4 * n, 4)}, v{vOR} offset:{1088 * n}", "ds_r", [f"v{vOR}"], R("v", vB + 4 * n, 4)))
    p.append(raw("s_waitcnt lgkmcnt(0)"))
    for n in range(4):
        p.append(Ins(f"buffer_store_dwordx4 {rng('v', vB + 4 * n, 4)}, v{vOS}, {rng('s', SRD_O, 4)}, s{soff} offen offset:{n * 1024}", "vst",
                     [f"v{vOS}"] + R("v", vB + 4 * n, 4), [], data=R("v", vB + 4 * n, 4)))
    return p


class Epi:
    def __init__(self):
        self.last_lds = None
        self.last_store = None
        self.last_mul = [None, None]
        self.last_cmp = None


def epi_flex(ep, head, t, p0, dl_o, dl_st, prio):
    ops = []
    RI, T = vRI[t & 1], vT[1]
    f = sFail[head]
    deps = []
    if ep.last_cmp: deps.append((ep.last_cmp, 0))
    if ep.last_mul[t & 1]: deps.append((ep.last_mul[t & 1], 0))
    dl0 = dl_o(0) - 2
    a = chain([valu(f"v_accvgpr_read_b32 v{T}, a{aL(t)}", [f"a{aL(t)}"], [f"v{T}"]),
               trans(f"v_rcp_f32 v{RI}, v{T}", [f"v{T}"], [f"v{RI}"]),
               valu(f"v_cmp_nge_f32 vcc, 0x{OPT['thr']:x}, v{T}", [f"v{T}"], ["vcc"])], min(p0 + 8 + 3, dl0), dl0, first_deps=deps, prio=prio)
    so = Op(salu(f"s_or_b64 s[{f}:{f + 1}], s[{f}:{f + 1}], vcc", ["vcc", f"s{f}", f"s{f + 1}"], [f"s{f}", f"s{f + 1}", "scc"]),
            a[2].rel, dl_st, [(a[2], 2)], pos="pre", prio=prio)
    ep.last_cmp = so
    ops += a + [so]
    prev = a[1]
    first = True
    for m in range(4):
        dl = dl_o(2 * m)
        for db in (2 * m, 2 * m + 1):
            b = vO(t, db)
            it = [valu(f"v_mul_f32 v{b + k}, v{RI}, v{b + k}", [f"v{b + k}", f"v{RI}"], [f"v{b + k}"]) for k in range(4)]
            it.insert(2, valu(f"v_cvt_pk_bf16_f32 v{b}, v{b}, v{b + 1}", R("v", b, 2), [f"v{b}"]))
            it.append(valu(f"v_cvt_pk_bf16_f32 v{b + 1}, v{b + 2}, v{b + 3}", R("v", b + 2, 2), [f"v{b + 1}"]))
            c = chain(it, a[0].rel, dl, first_deps=[(prev, 1 if first else 0)], prio=prio + 2 + 2 * db)
            first = False
            ops += c
            prev = c[-1]
        b0, b1 = vO(t, 2 * m), vO(t, 2 * m + 1)
        w = Op(Ins(f"ds_write2_b64 v{vOW}, v[{b0}:{b0 + 1}], v[{b1}:{b1 + 1}] offset0:{8 * m} offset1:{8 * m + 4}", "ds_w",
                   [f"v{vOW}"] + R("v", b0, 2) + R("v", b1, 2), [], 20), a[0].rel, dl,
               [(prev, 0)] + ([(ep.last_lds, 0)] if ep.last_lds else []), pos="front", prio=prio + 3 + 4 * m)
        ops.append(w)
        ep.last_lds = w
    ep.last_mul[t & 1] = prev
    rb = []
    for n in range(4):
        deps = [(ep.last_lds, 0)]
        if n == 0 and ep.last_store: deps.append((ep.last_store, 1))
        r = Op(Ins(f"ds_read_b128 {rng('v', vB + 4 * n, 4)}, v{vOR} offset:{1088 * n}", "ds_r", [f"v{vOR}"], R("v", vB + 4 * n, 4), 4),
               a[0].rel, dl_st, deps, pos="front", prio=prio + 18)
        ops.append(r)
        ep.last_lds = r
        rb.append(r)
    wt = Op(wait(l=True), a[0].rel, dl_st, [(rb[-1], 3)], pos="pre", prio=prio + 20)
    ops.append(wt)
    st = chain([o_store(n) for n in range(4)], a[0].rel, dl_st, pos="front", first_deps=[(wt, 0)], prio=prio + 22, step=2, mg=1)
    ops += st
    ad = Op(salu(f"s_add_u32 s{sOo}, s{sOo}, 0x{0x1000 if t < 5 else 0x18000 - 0x5000:x}", [f"s{sOo}"], [f"s{sOo}", "scc"]),
            a[0].rel, dl_st, [(st[-1], 1)], pos="pre", prio=prio + 30)
    ops.append(ad)
    ep.last_store = ad
    return ops


def kv_flex(blk, base, doK=True, doV=True, dodma=True, dma_g=(40, 57, 74, 91), lastgap=10 ** 9):
    ops = []
    b = fixed(bar(), base + 23, "front")
    ops.append(b)
    prev = b
    if doK:
        kr = chain([k_read(blk + 1, n) for n in range(8)], base + 24, base + 70, pos="front", first_deps=[(b, 0)], prio=base + 28, step=4)
        ops += kr
        ops.append(fixed(wait(l=True), base + 90, "pre", [(kr[-1], 1)]))
        prev = kr[-1]
    if doV:
        vr = chain([v_read(blk + 1, n) for n in range(16)], base + 24, base + BL + 10, pos="front", first_deps=[(prev, 0)],
                   prio=base + 62, step=3)
        ops += vr
        last_v = vr[-1]
    if dodma:
        mv = Op(m0_for("V"), base + 24, base + dma_g[0] - 1, pos="pre")
        v0 = fixed(dma("V", 0), base + dma_g[0], "front", [(mv, 1)])
        v1 = fixed(dma("V", 1024), base + dma_g[1], "front")
        mk = Op(m0_for("K"), base + dma_g[1] + 1, base + dma_g[2] - 1, pos="pre")
        k0 = fixed(dma("K", 0), base + dma_g[2], "front", [(mk, 1)])
        k1 = fixed(dma("K", 1024), base + dma_g[3], "front")
        oa = Op(off_add(), base + dma_g[3] + 1, base + BL + 20, pos="pre")
        xs = Op(x_step(blk), base + dma_g[3] + 1, base + BL + 20, pos="pre")
        ops += [mv, v0, v1, mk, k0, k1, oa, xs]
        if OPT["rot"]:
            ops.append(Op(off_fin(), base + dma_g[3] + 1, base + BL + 21, [(oa, 1)], pos="pre"))
    if blk & 1 == 0:
        if doK:
            ops.append(Op(addr_xor(vKA, "ka"), base + 71, base + BL + 20, [(kr[-1], 0)]))
        if doV:
            for k in range(2):
                ops.append(Op(addr_xor(vVA[k], f"va{k}"), base + 71, base + BL + 21, [(last_v, 0)]))
    if base + BL + 22 <= lastgap:
        ops.append(fixed(wait(v=True, l=True, pre=True), base + BL + 22, "pre"))
    return ops


def sched_auto(mf, make_ops, name, B=None, quiet_gaps=()):
    res = {}
    for b in ([B] if B else range(8, 64, 4)):
        ops = make_ops()
        bud = [(b if mf[g] is not None else b + 8) for g in range(len(mf))]
        for g in quiet_gaps:
            bud[g] = 0
        res[b] = schedule(mf, ops, bud, name=name, L=16)
    lo = min(r[1] for r in res.values())
    b = max(k for k, r in res.items() if r[1] <= lo * 1.01)
    print(f"; {name}: {[(k, r[1]) for k, r in res.items()]}\n;   budget {b} loads {res[b][2]}", file=sys.stderr)
    return res[b][0]


segs = {}


def build_trans():
    X0, X1 = 15 * BL + 23, 17 * BL + 23
    mf = [mf_at(X) for X in range(X0, X1)]
    rel = lambda blk, g: blk * BL + g - X0

    def mk():
        ops = []
        for blk, ts in ((15, range(1, 6)), (16, range(6)), (17, [0])):
            for t in ts:
                s = rel(blk, PL * t + 7)
                ops += sm_flex(t, s, first=(blk == 16), dl=min(s + 16, len(mf) - 2))
        ops += kv_flex(15, rel(15, 0), dma_g=(26, 28, 30, 32))
        ops += kv_flex(16, rel(16, 0), dma_g=(84, 88, 92, 96))
        ep = Epi()
        for t in range(6):
            lo = max(1, rel(15, PL * t + 8))
            w = Op(wait(v=True), lo, rel(16, PL * t) - 8, pos="pre", prio=lo)
            deps = [(w, 0)] + ([(ep.last_lds, 0)] if ep.last_lds else [])
            q = chain([q_read(1, t, ks) for ks in range(4)], lo, rel(16, PL * t) - 6, pos="front", first_deps=deps, prio=lo)
            ep.last_lds = q[-1]
            ops += [w] + q
            ops.append(fixed(wait(l=True), rel(16, PL * t) - 1, "pre", [(q[-1], 1)]))
            if t >= 1:
                u = t - 1
                p0 = rel(15, PL * (u + 1) + 8)
                ops += epi_flex(ep, 0, u, p0, lambda db, u=u: rel(16, PL * (u + 1) + 8 + db) - 1, rel(16, 80) if u < 4 else rel(16, 83), p0 + 11)
        p0 = rel(16, 8)
        ops += epi_flex(ep, 0, 5, p0, lambda db: rel(17, 8 + db) - 1, rel(17, 5), p0 + 11)
        ops.append(Op(salu(f"s_mov_b32 s{sCnt}, 7", [], [f"s{sCnt}"]), 5, 100, pos="pre"))
        ops.append(Op(salu(f"s_mov_b32 s{sPh}, 1", [], [f"s{sPh}"]), 5, 100, pos="pre"))
        return ops

    out = sched_auto(mf, mk, "trans", B=OPT["btrans"], quiet_gaps=(0, rel(16, 22), rel(16, 23), len(mf) - 1))
    segs["trans"] = [label("L_trans")] + out + [raw("s_branch L_loopB", kind="branch")]


def build_tail():
    X0, X1 = 31 * BL + 23, 32 * BL + 17 + 40
    mf = [mf_at(X) for X in range(X0, X1)]
    rel = lambda blk, g: blk * BL + g - X0
    G = len(mf)

    def mk():
        ops = []
        for t in range(1, 6):
            ops += sm_flex(t, rel(31, PL * t + 7))
        ep = Epi()
        for u in range(6):
            p0 = rel(31, PL * (u + 1) + 8)
            ops += epi_flex(ep, 1, u, p0, lambda db: G - 12, G - 1, p0 + 11)
        return ops

    segs["tail"] = [label("L_tail")] + sched_auto(mf, mk, "tail", B=OPT["btail"])


def set_off(v):
    if OPT["rot"]:
        return salu(f"s_xor_b32 s{sOff}, s{sRot}, 0x{v:x}", [f"s{sRot}"], [f"s{sOff}", "scc"], sim=setter(f"s{sOff}", v))
    return salu(f"s_mov_b32 s{sOff}, 0x{v:x}", [], [f"s{sOff}"], sim=setter(f"s{sOff}", v))


class Stream:
    def __init__(self):
        self.seq = []
        order = "K0 Q0 Q1 V0 Q2 Q3 K1 Q4 V1 Q5 K2 V2 K3 V3".split()
        for w in order:
            for h in range(4 if w[0] == "Q" else 2):
                self.seq.append((w[0], int(w[1]), h))
        self.pos = 0
        self.end = {}
        for k, (ten, x, h) in enumerate(self.seq):
            self.end[ten + str(x)] = k + 1

    def upto(self, n):
        out = []
        while self.pos < min(n, len(self.seq)):
            ten, x, h = self.seq[self.pos]
            self.pos += 1
            if ten == "Q":
                if h in (0, 2):
                    out.append(m0_for("Q"))
                    out.append(nop(0))
                out.append(dma("Q", 1024 * (h & 1)))
                if h & 1:
                    out += [qm_add(), qo_add(), qd_xor()]
            else:
                if h == 0:
                    v = 8192 * x + (VRING if ten == "V" else 0)
                    out.append(salu(f"s_add_u32 m0, s6, 0x{v:x}", ["s6"], ["m0", "scc"], sim=setter("m0", v)))
                    out.append(set_off(8192 * x))
                elif self.seq[self.pos - 2][0] != ten:
                    raise AssertionError
                out.append(dma(ten, 1024 * h))
        return out

    def ahead(self, name):
        n = self.end[name] + OPT["ahead"]
        n -= n & 1
        return self.upto(n)


def V(text, rd=(), wr=(), **meta): return valu(text, rd, wr, **meta)
def S(text, rd=(), wr=(), **meta): return salu(text, rd, wr, **meta)


def pf_code(a):
    a(raw("s_getpc_b64 s[44:45]"))
    a(label("L_pc"))
    a(raw("s_sub_u32 s44, s44, L_pc-" + NAME + "_kernel"))
    a(raw("s_subb_u32 s45, s45, 0"))
    a(raw("s_mov_b32 s46, L_codeend-" + NAME + "_kernel"))
    a(raw("s_mov_b32 s47, 0x20000"))
    a(raw("s_lshr_b32 s43, s2, 3"))
    a(raw("s_and_b32 s43, s43, 7"))
    a(raw(f"s_lshl_b32 s43, s43, 2"))
    a(raw(f"s_add_u32 s43, s43, s{sW}"))
    a(raw("s_lshl_b32 s43, s43, 10"))
    a(V("v_lshlrev_b32 v6, 4, v2", ["v2"], ["v6"]))
    a(Ins(f"buffer_load_dwordx4 v[{vB}:{vB + 3}], v6, s[44:47], s43 offen", "vld", ["v6"], [], 10))


def build_start():
    sm = Stream()
    p = []
    a = p.append
    a(S("s_cmp_ge_u32 s2, 0x100", ["s2"], ["scc"]))
    a(raw("s_cbranch_scc1 L_end", kind="branch", rd=["scc"]))
    a(raw("s_load_dwordx8 s[24:31], s[0:1], 0"))
    if OPT["stamp"]:
        a(raw("s_load_dwordx2 s[60:61], s[0:1], 40"))
        a(raw("s_memrealtime s[64:65]" if OPT["stamp"] == 2 else "s_memtime s[64:65]"))
    if OPT["stamp"] or OPT["spin"]:
        a(raw("s_memrealtime s[56:57]"))
    a(V("v_lshrrev_b32 v1, 6, v0", ["v0"], ["v1"]))
    a(V("v_and_b32 v2, 63, v0", ["v0"], ["v2"]))
    a(V(f"v_readfirstlane_b32 s{sW}, v1", ["v1"], [f"s{sW}"], readlane=True))
    if OPT["pf"] == 2:
        pf_code(a)
    a(V("v_bfe_u32 v3, v2, 2, 2", ["v2"], ["v3"]))
    a(V("v_lshrrev_b32 v4, 4, v2", ["v2"], ["v4"]))
    a(V("v_and_b32 v5, 3, v2", ["v2"], ["v5"]))
    a(V("v_lshlrev_b32 v6, 8, v3", ["v3"], ["v6"]))
    a(V("v_lshl_add_u32 v6, v4, 6, v6", ["v4", "v6"], ["v6"]))
    a(V("v_lshl_add_u32 v7, v1, 11, v6", ["v1", "v6"], ["v7"]))
    a(V("v_and_b32 v8, 2, v1", ["v1"], ["v8"]))
    a(V("v_xor_b32 v8, v8, v5", ["v8", "v5"], ["v8"]))
    a(V(f"v_lshl_add_u32 v{vDK}, v8, 4, v7", ["v8", "v7"], [f"v{vDK}"]))
    a(V("v_mul_u32_u24 v9, 0x6000, v1", ["v1"], ["v9"]))
    a(V("v_add_u32 v6, v6, v9", ["v6", "v9"], ["v6"]))
    a(V(f"v_lshl_add_u32 v{vQD}, v5, 4, v6", ["v5", "v6"], [f"v{vQD}"], sim=setter("qd", 0)))
    a(V("v_lshlrev_b32 v8, 1, v1", ["v1"], ["v8"]))
    a(V("v_and_b32 v8, 2, v8", ["v8"], ["v8"]))
    a(V("v_xor_b32 v8, v8, v5", ["v8", "v5"], ["v8"]))
    a(V(f"v_lshl_add_u32 v{vDV}, v8, 4, v7", ["v8", "v7"], [f"v{vDV}"]))
    if OPT["rot"] == 1:
        a(S(f"s_lshr_b32 s{sRot}, s2, 3", ["s2"], [f"s{sRot}", "scc"]))
        a(S(f"s_and_b32 s{sRot}, s{sRot}, 15", [f"s{sRot}"], [f"s{sRot}", "scc"]))
        a(S(f"s_lshl_b32 s{sRot}, s{sRot}, 13", [f"s{sRot}"], [f"s{sRot}", "scc"]))
    if OPT["rot"] == 2:
        a(S(f"s_and_b32 s{sRot}, s2, 15", ["s2"], [f"s{sRot}", "scc"]))
        a(S(f"s_lshl_b32 s{sRot}, s{sRot}, 13", [f"s{sRot}"], [f"s{sRot}", "scc"]))
    if OPT["rot"] == 3:
        a(S(f"s_lshr_b32 s{sRot}, s2, 4", ["s2"], [f"s{sRot}", "scc"]))
        a(S(f"s_xor_b32 s{sRot}, s{sRot}, s2", [f"s{sRot}", "s2"], [f"s{sRot}", "scc"]))
        a(S(f"s_and_b32 s{sRot}, s{sRot}, 15", [f"s{sRot}"], [f"s{sRot}", "scc"]))
        a(S(f"s_lshl_b32 s{sRot}, s{sRot}, 13", [f"s{sRot}"], [f"s{sRot}", "scc"]))
    a(S("s_lshl_b32 s4, s2, 18", ["s2"], ["s4", "scc"]))
    a(S("s_mul_i32 s5, s2, 0x30000", ["s2"], ["s5"]))
    a(S(f"s_lshl_b32 s6, s{sW}, 11", [f"s{sW}"], ["s6", "scc"]))
    a(S(f"s_mul_i32 s7, s{sW}, 0x6000", [f"s{sW}"], ["s7"]))
    a(S(f"s_add_u32 s7, s7, 0x{STAGE:x}", ["s7"], ["s7", "scc"]))
    a(S(f"s_mov_b32 s{sQm}, s7", ["s7"], [f"s{sQm}"], sim=setter("qm", STAGE)))
    a(S(f"s_mov_b32 s{sQo}, 0", [], [f"s{sQo}"], sim=setter(f"s{sQo}", 0)))
    for srd, size in ((SRD_K, 0x40000), (SRD_V, 0x40000), (SRD_Q, 0x30000), (SRD_O, 0x30000)):
        a(S(f"s_mov_b32 s{srd + 2}, 0x{size:x}", [], [f"s{srd + 2}"]))
        a(S(f"s_mov_b32 s{srd + 3}, 0x20000", [], [f"s{srd + 3}"]))
    a(raw("s_waitcnt lgkmcnt(0)"))
    for srd, ptr, base in ((SRD_K, 26, 4), (SRD_Q, 24, 5), (SRD_V, 28, 4), (SRD_O, 30, 5)):
        a(S(f"s_add_u32 s{srd}, s{ptr}, s{base}", [], [f"s{srd}", "scc"]))
        a(S(f"s_addc_u32 s{srd + 1}, s{ptr + 1}, 0", ["scc"], [f"s{srd + 1}", "scc"]))
    p += sm.upto(12)
    if OPT["pf"] == 1:
        pf_code(a)
    if OPT["tlb"]:
        a(Ins(f"buffer_load_dword v{vB + 4}, off, {rng('s', SRD_O, 4)}, 0", "vld", [], [], 10))
        a(S("s_mov_b32 s43, 0x2fffc", [], ["s43"]))
        a(Ins(f"buffer_load_dword v{vB + 5}, off, {rng('s', SRD_O, 4)}, s43", "vld", [], [], 10))
    a(V("v_lshlrev_b32 v6, 6, v5", ["v5"], ["v6"]))
    a(V("v_and_b32 v7, 2, v3", ["v3"], ["v7"]))
    a(V("v_xor_b32 v7, v7, v4", ["v7", "v4"], ["v7"]))
    a(V("v_lshl_add_u32 v6, v7, 4, v6", ["v7", "v6"], ["v6"]))
    a(V(f"v_lshl_add_u32 v{vKA}, v3, 11, v6", ["v3", "v6"], [f"v{vKA}"], sim=setter("ka", 0)))
    a(V("v_lshl_add_u32 v6, v3, 10, v6", ["v3", "v6"], ["v6"]))
    a(V(f"v_add_u32 v{vQR}, s7, v6", ["s7", "v6"], [f"v{vQR}"]))
    a(V("v_lshlrev_b32 v6, 11, v4", ["v4"], ["v6"]))
    a(V("v_lshl_add_u32 v6, v3, 6, v6", ["v3", "v6"], ["v6"]))
    a(V("v_and_b32 v7, 1, v4", ["v4"], ["v7"]))
    a(V("v_lshl_add_u32 v6, v7, 5, v6", ["v7", "v6"], ["v6"]))
    a(V("v_lshrrev_b32 v7, 1, v5", ["v5"], ["v7"]))
    a(V("v_lshl_add_u32 v6, v7, 4, v6", ["v7", "v6"], ["v6"]))
    a(V("v_and_b32 v7, 1, v5", ["v5"], ["v7"]))
    a(V("v_lshl_add_u32 v6, v7, 3, v6", ["v7", "v6"], ["v6"]))
    a(V(f"v_xor_b32 v{vVA[0]}, 0x{VRING:x}, v6", ["v6"], [f"v{vVA[0]}"], sim=setter("va0", VRING)))
    a(V(f"v_xor_b32 v{vVA[1]}, 0x{VRING | 32:x}, v6", ["v6"], [f"v{vVA[1]}"], sim=setter("va1", VRING)))
    a(V("v_and_b32 v6, 15, v2", ["v2"], ["v6"]))
    a(V("v_mul_u32_u24 v7, 0x110, v6", ["v6"], ["v7"]))
    a(V("v_lshl_add_u32 v7, v4, 3, v7", ["v4", "v7"], ["v7"]))
    a(V(f"v_add_u32 v{vOW}, s7, v7", ["s7", "v7"], [f"v{vOW}"]))
    a(V("v_mul_u32_u24 v7, 0x110, v4", ["v4"], ["v7"]))
    a(V("v_lshl_add_u32 v7, v6, 4, v7", ["v6", "v7"], ["v7"]))
    a(V(f"v_add_u32 v{vOR}, s7, v7", ["s7", "v7"], [f"v{vOR}"]))
    a(V(f"v_lshl_add_u32 v{vOS}, v2, 4, v9", ["v2", "v9"], [f"v{vOS}"]))
    a(V("v_cmp_eq_u32 vcc, 0, v5", ["v5"], ["vcc"]))
    a(V("v_mov_b32 v7, 0x3f803f80", [], ["v7"]))
    a(S(f"s_mov_b32 s{sC}, 0x{f2u(CSC):x}", [], [f"s{sC}"]))
    a(V("v_cndmask_b32 v7, 0, v7, vcc", ["v7", "vcc"], ["v7"]))
    for k in range(4):
        a(V(f"v_accvgpr_write_b32 a{aONE + k}, v7", ["v7"], [f"a{aONE + k}"]))
    a(S(f"s_mov_b32 s{sNegC}, 0x{f2u(-CSC):x}", [], [f"s{sNegC}"]))
    a(S(f"s_mov_b32 s{sCnt}, 1", [], [f"s{sCnt}"]))
    if OPT["stamp"] == 2:
        a(raw("s_mov_b32 s86, 0"))
        a(raw("v_mov_b32 v250, 0"))
    a(S(f"s_mov_b32 s{sPh}, 0", [], [f"s{sPh}"]))
    a(S(f"s_mov_b32 s{sOo}, 0", [], [f"s{sOo}"]))
    for f in sFail:
        a(S(f"s_mov_b64 s[{f}:{f + 1}], 0", [], [f"s{f}", f"s{f + 1}"]))
    p += sm.ahead("K0")
    a(wait(v=True, pre=True))
    a(bar())
    p += [k_read(0, n) for n in range(8)]
    p += sm.ahead("Q0")
    a(wait(v=True))
    p += [q_read(0, 0, ks) for ks in range(4)]
    a(wait(l=True))
    segs["pro"] = p

    X1 = BL + 23
    mf = [mf_at(X) for X in range(X1)]
    pos0 = sm.pos

    def mk():
        sm.pos = pos0
        ops = []
        for t in range(6):
            ops += sm_flex(t, PL * t + 7, first=True)
        ops += sm_flex(0, BL + 7, dl=X1 - 2)
        def q_event(t, g):
            return fixed(Grp(sm.ahead(f"Q{t}") + [wait(v=True)] + [q_read(0, t, ks) for ks in range(4)]), g, "end")
        ops.append(q_event(1, 14))
        ops.append(fixed(wait(l=True), 16, "end"))
        ops.append(fixed(Grp(sm.ahead("V0") + [wait(v=True, pre=True), bar()] + [v_read(0, n) for n in range(16)]), 19, "end"))
        ops.append(fixed(wait(l=True), 24, "end"))
        for t in (2, 3, 4):
            ops.append(q_event(t, PL * t - 4))
            ops.append(fixed(wait(l=True), PL * t - 1, "end"))
        ev = fixed(Grp(sm.ahead("V1") + [wait(v=True, l=True, pre=True), bar()] + [k_read(1, n) for n in range(8)]), 72, "end")
        ops.append(ev)
        vr = chain([v_read(1, n) for n in range(16)], 73, BL + 10, pos="front", first_deps=[(ev, 1)], prio=74, step=1)
        ops += vr
        ops.append(q_event(5, PL * 5 - 4))
        ops.append(fixed(wait(l=True), PL * 5 - 1, "end"))
        rest = sm.upto(10 ** 6)
        rest += [S(f"s_mov_b32 s{sX}, s6", ["s6"], [f"s{sX}"], sim=setter("x", 0)),
                 set_off(0x8000), S(f"s_mov_b32 s{sLin}, 0x8000", [], [f"s{sLin}"]),
                 S(f"s_mov_b32 s{sQm}, s7", ["s7"], [f"s{sQm}"], sim=setter("qm", STAGE)),
                 S(f"s_mov_b32 s{sQo}, 0x18000", [], [f"s{sQo}"], sim=setter(f"s{sQo}", 0x18000))]
        ops.append(fixed(Grp(rest), 90, "end"))
        ops.append(fixed(m0_for("V"), 92, "pre"))
        ops.append(fixed(dma("V", 0), 94, "front"))
        ops.append(fixed(dma("V", 1024), 98, "front"))
        ops.append(fixed(m0_for("K"), 100, "pre"))
        ops.append(fixed(dma("K", 0), 102, "front"))
        ops.append(fixed(dma("K", 1024), 106, "front"))
        ops.append(fixed(off_add(), 108, "pre"))
        ops.append(fixed(x_step(0), 109, "pre"))
        if OPT["rot"]:
            ops.append(fixed(off_fin(), 110, "pre"))
        ops.append(Op(addr_xor(vKA, "ka"), 73, BL + 20))
        for k in range(2):
            ops.append(Op(addr_xor(vVA[k], f"va{k}"), 73, BL + 21, [(vr[-1], 0)]))
        ops.append(fixed(wait(v=True, l=True, pre=True), BL + 22, "pre"))
        return ops

    segs["first"] = sched_auto(mf, mk, "first", B=OPT["bfirst"], quiet_gaps=(X1 - 1,))


def stamp(k):
    return raw(f"s_mem{'real' if OPT['stamp'] == 2 else ''}time s[{64 + 2 * k}:{65 + 2 * k}]")


build_start()
segs["loopB"] = [label("L_loopB")] + body_loop(False) + [raw("s_cbranch_scc1 L_loopB", kind="branch", rd=["scc"], scc_from="loop")]
segs["disp"] = [S(f"s_cmp_lg_u32 s{sPh}, 0", [f"s{sPh}"], ["scc"]), raw("s_cbranch_scc1 L_tail", kind="branch", rd=["scc"])]
segs["toA"] = [S(f"s_mov_b32 s{sCnt}, 6", [], [f"s{sCnt}"])]
segs["loopA"] = [label("L_loopA")] + body_loop(True) + [raw("s_cbranch_scc1 L_loopA", kind="branch", rd=["scc"], scc_from="loop")]
build_trans()
build_tail()

if OPT["stamp"]:
    ib = next(i for i, x in enumerate(segs["pro"]) if x.kind == "bar")
    segs["pro"].insert(ib + 1, stamp(1))
    segs["pro"].append(stamp(2))
    segs["first"].append(stamp(3))
    segs["toA"].insert(0, stamp(4))
    segs["trans"].insert(1, stamp(5))
    segs["trans"].insert(-1, stamp(6))
    segs["tail"].insert(1, stamp(7))
    segs["tail"].append(stamp(8))

trace = ["pro", "first", "loopB", "disp", "toA"] + ["loopA"] * 6 + ["trans"] + ["loopB"] * 7 + ["disp", "tail"]
nfix = check_hazards(trace, segs, fix_ok={"pro", "first", "trans", "tail"})
check_scc(trace, segs)
mx = derive_waits(trace, segs, {})
print(f"; exposed nops {nfix}, max vmem outstanding {mx}", file=sys.stderr)
for s in ("pro", "first", "loopB", "loopA", "trans", "tail"):
    print(s, [i.render().strip()[10:] for i in segs[s] if i.kind == "wait"], file=sys.stderr)

ref = open(f"cdna_kernels/{NAME}.s.ref").read()
out = [l for l in ref.splitlines() if l.startswith(";") and "@launch" not in l and "Override" not in l and "grid=ceil" not in l]
out.append("; @launch grid=(256,1,1) block=(256,1,1) lds=163840")
out.append('.amdgcn_target "amdgcn-amd-amdhsa--gfx950"')
out.append(".text")
out.append(f".globl {NAME}_kernel")
out.append(".p2align 8")
out.append(f".type {NAME}_kernel,@function")
out.append(f"{NAME}_kernel:")


def emit(s):
    out.append(f"; ---- {s}")
    for i in segs[s]:
        out.append(i.render())


for s in ("pro", "first", "loopB", "disp", "toA", "loopA", "trans", "tail"):
    if OPT["align"] and s in ("loopB", "loopA"):
        out.append(".p2align 6" if OPT["align"] == 1 else ".p2align 3")
    emit(s)
if OPT["stamp"]:
    out += """    s_waitcnt vmcnt(0)
    s_memXtime s[82:83]
    s_memrealtime s[58:59]
    s_waitcnt lgkmcnt(0)
    s_mov_b32 s62, 0x10000
    s_mov_b32 s63, 0x20000
    s_lshl_b32 s4, s2, 2
    s_add_u32 s4, s4, s3
    s_lshl_b32 s4, s4, 6
    v_mov_b32 v1, s4""".replace("memX", "memreal" if OPT["stamp"] == 2 else "mem").split("\n")
    for k in range(10):
        out.append(f"    v_mov_b32 v{4 + k}, s{64 + 2 * k}")
    out += """    v_mov_b32 v14, s56
    v_mov_b32 v15, s58
    s_getreg_b32 s5, hwreg(HW_REG_XCC_ID)
    v_mov_b32 v16, s5
    s_getreg_b32 s5, hwreg(HW_REG_HW_ID)
    v_mov_b32 v17, s5
    s_nop 1
    buffer_store_dwordx2 v[16:17], v1, s[60:63], 0 offen offset:48
    buffer_store_dwordx4 v[4:7], v1, s[60:63], 0 offen
    buffer_store_dwordx4 v[8:11], v1, s[60:63], 0 offen offset:16
    buffer_store_dwordx4 v[12:15], v1, s[60:63], 0 offen offset:32
    s_mov_b32 s62, 0x60000
    s_lshl_b32 s4, s4, 2
    s_add_u32 s4, s4, 0x10000
    v_mbcnt_lo_u32_b32 v1, -1, 0
    v_mbcnt_hi_u32_b32 v1, -1, v1
    v_lshlrev_b32 v1, 2, v1
    s_nop 1
    buffer_store_dword v250, v1, s[60:63], s4 offen""".split("\n")
if OPT["spin"]:
    out += f"""    s_waitcnt vmcnt(0)
L_spin:
    s_memrealtime s[58:59]
    s_waitcnt lgkmcnt(0)
    s_sub_u32 s58, s58, s56
    s_cmp_lt_u32 s58, {OPT['spin']}
    s_cbranch_scc1 L_spin""".split("\n")
if OPT["slow"]:
    import slowpath
    out += slowpath.emit(globals())
out.append("L_end:")
out.append("    s_endpgm")
out.append("L_codeend:")
out.append(f""".section .rodata,"a"
.p2align 6
.amdhsa_kernel {NAME}_kernel
  .amdhsa_next_free_vgpr 512
  .amdhsa_next_free_sgpr 96
  .amdhsa_accum_offset 256
  .amdhsa_group_segment_fixed_size 0
  .amdhsa_kernarg_size 48
  .amdhsa_user_sgpr_count 2
  .amdhsa_user_sgpr_kernarg_segment_ptr 1
  .amdhsa_system_sgpr_workgroup_id_x 1
  .amdhsa_float_denorm_mode_32 3
.end_amdhsa_kernel""")
open(sys.argv[1], "w").write("\n".join(out) + "\n")
```
